```python
import torch

def _softmax(x, axis=-1):
    return torch.softmax(x, dim=axis)

def _gelu(x):
    return torch.nn.functional.gelu(x, approximate='tanh')

def _silu(x):
    return torch.nn.functional.silu(x)

def _sigmoid(x):
    return torch.sigmoid(x)

def _layernorm(x, axis=-1, eps=1e-05):
    m = x.mean(dim=axis, keepdim=True)
    v = x.var(dim=axis, keepdim=True, unbiased=False)
    return (x - m) / torch.sqrt(v + eps)

def _scatter_add(tgt, idx, src, axis=0):
    return tgt.clone().index_add_(axis, idx, src)

def _segment_sum(src, seg, n):
    out = torch.zeros((n,) + src.shape[1:], dtype=src.dtype)
    return out.index_add_(0, seg, src)

def _pad(x, pw):
    flat = tuple((v for pair in reversed(pw) for v in pair))
    return torch.nn.functional.pad(x, flat)
kernel_name = 'parallel_sum__memory_aug_recurrent_mem_tr__dense_activation_relu__prompt'

def setup_inputs():

    _w = lambda a: (lambda t: t.to(torch.bfloat16) if t.is_floating_point() else t)(torch.as_tensor(a))

    def _A_setup():
        B, S, Dm = (1, 2048, 576)
        H, Dh = (32, 128)
        M, seg = (8, 32)
        seg = min(seg, S)
        S = S // seg * seg
        return {'x': _w((lambda *s: torch.randn(*s, dtype=torch.bfloat16) * 0.05)(B, S, Dm)), 'mem0': _w((lambda *s: torch.randn(*s, dtype=torch.bfloat16) * 1.6)(B, M, Dm)), 'Wq': _w((lambda *s: torch.randn(*s, dtype=torch.bfloat16) * 0.8)(Dm, H, Dh) * Dm ** (-0.5)), 'Wk': _w((lambda *s: torch.randn(*s, dtype=torch.bfloat16) * 0.8)(Dm, H, Dh) * Dm ** (-0.5)), 'Wv': _w((lambda *s: torch.randn(*s, dtype=torch.bfloat16) * 1.6)(Dm, H, Dh) * Dm ** (-0.5)), 'Wo': _w((lambda *s: torch.randn(*s, dtype=torch.bfloat16) * 1.6)(H, Dh, Dm) * (H * Dh) ** (-0.5)), 'seg_len': seg}
    _A_in = _A_setup()

    def _B_setup():
        B, S, D, Dff = (1, 2048, 576, 4608)
        return {'x': _w((lambda *s: torch.randn(*s, dtype=torch.bfloat16) * 0.05)(B, S, D)), 'w1': _w((lambda *s: torch.randn(*s, dtype=torch.bfloat16) * 0.05)(D, Dff)), 'w2': _w((lambda *s: torch.randn(*s, dtype=torch.bfloat16) * 0.05)(Dff, D))}
    _B_in = _B_setup()
    return {'A_x': _A_in['x'], 'A_mem0': _A_in['mem0'], 'A_Wq': _A_in['Wq'], 'A_Wk': _A_in['Wk'], 'A_Wv': _A_in['Wv'], 'A_Wo': _A_in['Wo'], 'A_seg_len': _A_in['seg_len'], 'B_x': _B_in['x'], 'B_w1': _B_in['w1'], 'B_w2': _B_in['w2']}

def reference(A_x, A_mem0, A_Wq, A_Wk, A_Wv, A_Wo, A_seg_len, B_x, B_w1, B_w2):

    def _A_ref(x, mem0, Wq, Wk, Wv, Wo, seg_len):
        B, S, Dm = x.shape
        H, Dh = (Wq.shape[1], Wq.shape[2])
        M = mem0.shape[1]
        scale = Dh ** (-0.5)
        n_seg = S // seg_len
        L = M + seg_len
        idx = torch.arange(L)
        mask = (idx[:, None] < M) | (idx[:, None] >= idx[None, :])
        mem = mem0
        outs = []
        for s in range(n_seg):
            xs = x[:, s * seg_len:(s + 1) * seg_len, :].clone()
            h = torch.concatenate([mem, xs], axis=1)
            q = torch.einsum('btd,dhe->bhte', h, Wq)
            k = torch.einsum('btd,dhe->bhte', h, Wk)
            v = torch.einsum('btd,dhe->bhte', h, Wv)
            scores = torch.einsum('bhqe,bhke->bhqk', q, k) * scale
            scores = torch.where(mask[None, None], scores, -1000000000.0)
            p = _softmax(scores, axis=-1)
            o = torch.einsum('bhqk,bhke->bhqe', p, v)
            o = torch.einsum('bhte,hed->btd', o, Wo)
            mem = o[:, :M, :].clone()
            outs.append(o[:, M:, :])
        return torch.concatenate(outs, axis=1)

    def _B_ref(x, w1, w2):
        h = torch.einsum('bsd,df->bsf', x, w1)
        zero = torch.zeros_like(h)
        h = torch.maximum(h, zero)
        return torch.einsum('bsf,fd->bsd', h, w2)
    x = A_x
    xn = _layernorm(x, axis=-1)
    return x + _A_ref(xn, A_mem0, A_Wq, A_Wk, A_Wv, A_Wo, A_seg_len) + _B_ref(xn, B_w1, B_w2)
```

```python
import re

def v(n, c=1):
    return f"v{n}" if c == 1 else f"v[{n}:{n+c-1}]"
def a(n, c=1):
    return f"a{n}" if c == 1 else f"a[{n}:{n+c-1}]"
def s(n, c=1):
    return f"s{n}" if c == 1 else f"s[{n}:{n+c-1}]"
def r(n, c=1):
    if n < 256:
        assert n + c <= 256, (n, c)
        return v(n, c)
    return a(n - 256, c)

_reg_re = re.compile(r"^(-|abs\()?\|?([vas])(\d+)\|?\)?$")
_rng_re = re.compile(r"^-?([vas])\[(\d+):(\d+)\]$")

def regs_of(tok):
    tok = tok.strip()
    m = _rng_re.match(tok)
    if m:
        return [(m.group(1), i) for i in range(int(m.group(2)), int(m.group(3)) + 1)]
    m = _reg_re.match(tok)
    if m:
        return [(m.group(2), int(m.group(3)))]
    if tok in ("vcc", "vcc_lo", "vcc_hi"):
        return [("s", "vcc")]
    if tok in ("exec", "exec_lo", "exec_hi"):
        return [("s", "exec")]
    if tok == "m0":
        return [("s", "m0")]
    if tok == "scc":
        return [("s", "scc")]
    return []

TRANS = ("v_exp_f32", "v_log_f32", "v_rcp_f32", "v_rsq_f32", "v_sqrt_f32", "v_sin_f32", "v_cos_f32", "v_rcp_iflag_f32")

class Ins:
    __slots__ = ("text", "op", "kind", "reads", "writes", "passes", "srcA", "srcB", "srcC", "dstD", "flags", "target",
                 "data", "comment")
    def __init__(self, text):
        self.text = text
        self.flags = set()
        self.reads = set()
        self.writes = set()
        self.passes = 0
        self.srcA = self.srcB = self.srcC = self.dstD = ()
        self.target = None
        self.data = set()
        t = text.split(";")[0].strip()
        if t.endswith(":"):
            self.kind = "label"; self.op = t[:-1]; return
        if t == "" or t.startswith("."):
            self.kind = "dir"; self.op = t; return
        parts = t.split(None, 1)
        op = parts[0]
        self.op = op
        rest = parts[1] if len(parts) > 1 else ""
        rest2 = re.sub(r"(\w+:\[[^\]]*\])", lambda m: m.group(1).replace(",", "#"), rest)
        toks = [x.strip() for x in rest2.split(",")] if rest2 else []
        mods = []
        if toks:
            last = toks[-1].split()
            if last:
                toks[-1] = last[0]
                mods = last[1:]
        R = [regs_of(x) for x in toks]
        def rd(i):
            if i < len(R): self.reads.update(R[i])
        def wr(i):
            if i < len(R): self.writes.update(R[i])
        modstr = " ".join(mods)
        if op.startswith("v_mfma") or op.startswith("v_smfmac"):
            self.kind = "mfma"
            if "32x32x16" in op or "32x32x8" in op: self.passes = 8
            elif "16x16x4_f32" in op: self.passes = 8
            else: self.passes = 4
            self.dstD = tuple(R[0]); self.srcA = tuple(R[1]); self.srcB = tuple(R[2])
            if op.startswith("v_smfmac"):
                self.srcC = tuple(R[0])
                self.srcB = tuple(R[2]) + tuple(R[3])
            else:
                self.srcC = tuple(R[3])
            self.writes.update(self.dstD)
            self.reads.update(self.srcA); self.reads.update(self.srcB); self.reads.update(self.srcC)
        elif op.startswith("v_"):
            self.kind = "valu"
            if op.startswith("v_cmp"):
                wr(0)
                for i in range(1, len(R)): rd(i)
                if op.startswith("v_cmpx"): raise ValueError("no cmpx")
            elif op.startswith("v_readfirstlane") or op.startswith("v_readlane"):
                wr(0); rd(1); rd(2); self.flags.add("readlane")
            elif "permlane" in op and "swap" in op:
                wr(0); wr(1); rd(0); rd(1); self.flags.add("permlane")
            elif op.startswith("v_swap"):
                wr(0); wr(1); rd(0); rd(1)
            elif re.match(r"v_(add|sub|subrev)_co_u32", op):
                wr(0); wr(1); rd(2); rd(3)
            elif re.match(r"v_(addc|subb|subbrev)_co_u32", op):
                wr(0); wr(1); rd(2); rd(3); rd(4)
            elif op.startswith("v_mad_u64_u32"):
                wr(0); wr(1); rd(2); rd(3); rd(4)
            else:
                wr(0)
                for i in range(1, len(R)): rd(i)
                if op.startswith("v_fmac") or op.startswith("v_pk_fmac") or op.startswith("v_writelane") or op.startswith("v_dot2c"):
                    rd(0)
                if op.startswith("v_cndmask") and len(toks) == 3:
                    self.reads.add(("s", "vcc"))
            if "_dpp" in op or "row_" in modstr or "quad_perm" in modstr or "row_bcast" in modstr:
                self.flags.add("dpp"); rd(0)
            if "_sdwa" in op or "dst_sel" in modstr or "op_sel" in modstr:
                self.flags.add("opsel"); rd(0)
            for t_ in TRANS:
                if op.startswith(t_): self.flags.add("trans")
        elif op.startswith("ds_"):
            self.kind = "ds"
            if op.startswith("ds_read") or op.startswith("ds_bpermute") or op.startswith("ds_permute") or op.startswith("ds_swizzle") or "_rtn" in op:
                wr(0)
                for i in range(1, len(R)): rd(i)
                self.flags.add("load")
            else:
                for i in range(len(R)): rd(i)
        elif op.startswith("buffer_") or op.startswith("global_"):
            self.kind = "vmem"
            lds = ("lds" in mods) or ("_lds_" in op)
            if lds:
                self.flags.add("ldsdma")
                for i in range(len(R)): rd(i)
                self.reads.add(("s", "m0"))
            elif "_load_" in op:
                wr(0); self.flags.add("load")
                for i in range(1, len(R)): rd(i)
            elif "_store_" in op:
                for i in range(len(R)): rd(i)
                di = 0 if op.startswith("buffer_") else 1
                self.data = set(R[di])
                if "x4" in op or "x3" in op: self.flags.add("widestore")
            elif "_atomic_" in op:
                for i in range(len(R)): rd(i)
                if "sc0" in mods:
                    self.flags.add("load")
                    if op.startswith("buffer_"):
                        wr(0)
                    else:
                        wr(0)
            else:
                for i in range(len(R)): rd(i)
        elif op.startswith("s_"):
            if op.startswith("s_load") or op in ("s_memtime", "s_memrealtime"):
                self.kind = "smem"; wr(0)
                for i in range(1, len(R)): rd(i)
                self.flags.add("load")
            elif op.startswith("s_cbranch") or op == "s_branch":
                self.kind = "branch"; self.target = toks[0]
            elif op in ("s_waitcnt", "s_barrier", "s_nop", "s_endpgm", "s_setprio", "s_sleep", "s_sethalt"):
                self.kind = "ctl"
            elif op.startswith("s_cmp") or op.startswith("s_bitcmp"):
                self.kind = "salu"
                for i in range(len(R)): rd(i)
            else:
                self.kind = "salu"
                wr(0)
                for i in range(1, len(R)): rd(i)
                if op.endswith("saveexec_b64"):
                    self.writes.add(("s", "exec")); self.reads.add(("s", "exec"))
                if op in ("s_addk_i32", "s_mulk_i32"): rd(0)
        else:
            raise ValueError("unknown op: " + text)

    def ws(self):
        if self.kind in ("label", "dir"): return 0
        if self.op == "s_nop":
            return int(self.text.split(";")[0].split()[1], 0) + 1
        return 1

def _vec(regs):
    return {x for x in regs if x[0] in ("v", "a")}
def _sca(regs):
    return {x for x in regs if x[0] == "s"}

T_AB = {2: 5, 4: 8, 8: 12, 16: 20}
T_COV = {2: 4, 4: 6, 8: 10, 16: 18}
T_WAR = {2: 1, 4: 3, 8: 7, 16: 15}

def need(p, c):
    n = 0
    if p.kind == "mfma":
        P = p.passes
        D = set(p.dstD)
        if c.kind == "mfma":
            C = set(c.srcC)
            if C & D:
                if tuple(c.srcC) == tuple(p.dstD) and c.passes == P:
                    n = max(n, 2 if P == 2 else 0)
                else:
                    n = max(n, T_COV[P])
            elif set(c.dstD) & D and c.passes < P:
                n = max(n, T_COV[P])
            if (set(c.srcA) | set(c.srcB)) & D:
                n = max(n, T_AB[P])
        elif c.kind in ("valu", "vmem", "ds"):
            if (c.reads | c.writes) & D:
                n = max(n, T_AB[P])
        if c.kind == "valu" and c.writes & set(p.srcC):
            n = max(n, T_WAR[P])
    elif p.kind == "valu":
        vw = _vec(p.writes)
        sw = _sca(p.writes)
        if vw:
            if c.kind == "mfma" and vw & c.reads: n = max(n, 2)
            if c.kind == "valu":
                if "dpp" in c.flags and vw & c.reads: n = max(n, 2)
                if "permlane" in c.flags and vw & c.reads: n = max(n, 2)
                if "readlane" in c.flags and vw & c.reads: n = max(n, 1)
                if "opsel" in p.flags and vw & (c.reads | c.writes): n = max(n, 1)
            if "trans" in p.flags and vw & c.reads and c.kind != "ctl": n = max(n, 1)
            if p.op.startswith("v_dot") and (vw & (c.reads | c.writes)) and c.op != p.op: n = max(n, 3)
            if p.op.startswith("v_dot") and c.op == p.op and (vw & c.reads): n = max(n, 3)
        if sw:
            if c.kind == "valu" and sw & c.reads:
                n = max(n, 4 if ("readlane" in c.flags or c.op.startswith("v_writelane") or c.op.startswith("v_div_fmas")) else 2)
            if c.kind == "vmem" and sw & c.reads: n = max(n, 5)
    elif p.kind == "salu":
        if ("s", "m0") in p.writes and c.kind == "vmem" and "ldsdma" in c.flags: n = max(n, 1)
    elif p.kind == "vmem":
        if "widestore" in p.flags and p.data & c.writes:
            n = max(n, 2 if c.kind == "valu" else 1)
    return n

MAXLOOK = 20

class Prog:
    def __init__(self):
        self.ins = []
        self._lab = 0
    def e(self, text):
        for line in text.split("\n"):
            line = line.strip()
            if line == "": continue
            if line.startswith(";"):
                i = Ins(".")
                i.text = line; i.kind = "dir"
                self.ins.append(i)
                continue
            self.ins.append(Ins(line))
    def __call__(self, text):
        self.e(text)
    def label(self, name):
        self.e(name + ":")
    def newlabel(self, base="L"):
        self._lab += 1
        return f"{base}_{self._lab}"

    def _preds(self):
        ins = self.ins
        labels = {x.op: i for i, x in enumerate(ins) if x.kind == "label"}
        br = {}
        for i, x in enumerate(ins):
            if x.kind == "branch":
                assert x.target in labels, x.text
                br.setdefault(labels[x.target], []).append(i)
        return labels, br

    def fix_hazards(self, timebased=True):
        ins = self.ins
        labels, br = self._preds()
        extra = [0] * len(ins)
        def preds(i):
            out = []
            if ins[i].kind == "label":
                out += br.get(i, [])
            if i > 0:
                p = ins[i - 1]
                if not (p.op in ("s_branch", "s_endpgm")):
                    out.append(i - 1)
            return out
        def elapsed(path):
            t = 0
            p0 = ins[path[0]]
            lastm = 0 if (p0.kind == "mfma") else None
            lastp = p0.passes if p0.kind == "mfma" else 0
            cur = p0
            t_next = 4 * p0.ws()
            for j in path[1:]:
                x = ins[j]
                t_next += 4 * extra[j]
                if x.kind in ("label", "dir"):
                    continue
                t = t_next
                if x.kind == "mfma":
                    if timebased and lastm is not None and j != path[-1]:
                        t = max(t, lastm + 4 * lastp)
                    lastm = t; lastp = x.passes
                t_next = t + 4 * x.ws()
            return t // 4 - 1
        total = 0
        for i, c in enumerate(ins):
            if c.kind in ("label", "dir", "ctl", "branch"):
                continue
            worst = 0
            stack = [(j, [i], 0) for j in preds(i)]
            while stack:
                j, path, w = stack.pop()
                if w >= MAXLOOK: continue
                path2 = [j] + path
                p = ins[j]
                if p.kind not in ("label", "dir"):
                    nd = need(p, c)
                    if nd > 0:
                        el = elapsed(path2)
                        if nd - el > worst: worst = nd - el
                w2 = w + p.ws() + extra[j]
                if len(path2) > 64: continue
                for k in preds(j):
                    stack.append((k, path2, w2))
            if worst > 0:
                extra[i] = worst
                total += worst
        out = []
        for i, c in enumerate(ins):
            n = extra[i]
            while n > 0:
                k = min(n, 16)
                out.append(Ins(f"s_nop {k-1}"))
                n -= k
            out.append(c)
        self.ins = out
        return total

    def check_waits(self, name="", force=()):
        ins = self.ins
        labels, br = self._preds()
        vm = []
        lg = []
        taken = {}
        pc = 0
        errs = []
        steps = 0
        while pc < len(ins) and steps < 2000000:
            steps += 1
            c = ins[pc]
            if c.op == "s_endpgm":
                break
            if c.kind == "branch":
                tgt = labels[c.target]
                if c.op == "s_branch":
                    if tgt <= pc:
                        if taken.get(pc, 0) >= 1:
                            pc += 1; continue
                        taken[pc] = taken.get(pc, 0) + 1
                    pc = tgt; continue
                if c.target in force and tgt > pc:
                    pc = tgt; continue
                if tgt <= pc and taken.get(pc, 0) < 1:
                    taken[pc] = 1; pc = tgt; continue
                pc += 1; continue
            if c.op == "s_waitcnt":
                m = re.search(r"vmcnt\((\d+)\)", c.text)
                if m:
                    n = int(m.group(1))
                    if len(vm) > n: vm = vm[len(vm) - n:] if n > 0 else []
                m = re.search(r"lgkmcnt\((\d+)\)", c.text)
                if m:
                    n = int(m.group(1))
                    if n == 0: lg = []
                    else:
                        sm = [x for x in lg if x[1] == "smem"]
                        dsq = [x for x in lg if x[1] != "smem"]
                        lg = sm + (dsq[len(dsq) - n:] if len(dsq) > n else dsq)
            elif c.kind not in ("label", "dir", "ctl"):
                touched = c.reads | c.writes
                for q, nm in ((vm, "vm"), (lg, "lgkm")):
                    for ent in q:
                        ov = ent[0] & touched
                        if ov and not (ov & c.reads) and ((nm == "vm" and c.kind == "vmem") or (nm == "lgkm" and c.kind == "ds")):
                            continue
                        if ov:
                            errs.append(f"{name} line {pc}: '{c.text}' touches pending {nm} regs {sorted(ov)[:4]} from '{ent[2]}'")
                if c.kind == "vmem":
                    vm.append((set(c.writes) if "load" in c.flags else set(), "vm", c.text))
                    if len(vm) > 63:
                        errs.append(f"{name} line {pc}: vmcnt overflow (>63 outstanding)")
                        vm = vm[-63:]
                elif c.kind == "ds":
                    lg.append((set(c.writes) if "load" in c.flags else set(), "ds", c.text))
                    if len(lg) > 15:
                        pass
                elif c.kind == "smem":
                    lg.append((set(c.writes), "smem", c.text))
            pc += 1
        return errs

    def text(self):
        out = []
        for x in self.ins:
            if x.kind == "label": out.append(x.text)
            elif x.kind == "dir": out.append(x.text)
            else: out.append("    " + x.text)
        return "\n".join(out) + "\n"

    def maxregs(self):
        mv = ma = ms = -1
        for x in self.ins:
            for t, n in (x.reads | x.writes):
                if t == "v": mv = max(mv, n)
                elif t == "a": ma = max(ma, n)
                elif t == "s" and isinstance(n, int): ms = max(ms, n)
        return mv, ma, ms

def kernel_text(name, prog, nfv=512, accum=256, nsgpr=102, extra_dir=""):
    return f""".text
.globl {name}
.p2align 8
.type {name},@function
{name}:
{prog.text()}
.section .rodata,"a"
.p2align 6
.amdhsa_kernel {name}
  .amdhsa_next_free_vgpr {nfv}
  .amdhsa_next_free_sgpr {nsgpr}
  .amdhsa_accum_offset {accum}
  .amdhsa_group_segment_fixed_size 0
  .amdhsa_kernarg_size 104
  .amdhsa_user_sgpr_count 2
  .amdhsa_user_sgpr_kernarg_segment_ptr 1
  .amdhsa_system_sgpr_workgroup_id_x 1
{extra_dir}.end_amdhsa_kernel
"""
```

```python
from asmdsl import *
from sched import Block, insert_waits, dump
from layout import *

MA = 0
LB0, LB1 = 36, 44
QA, KA, VA = 52, 60, 68
IDX, P1, PERM = 76, 77, 78
L_M = 0
L_SC = 9216
L_MM = 10240
L_O = 10496
L_T0 = 12544
L_T1 = L_T0 + 1024
L_T2 = L_T1 + 1024
L_T3 = L_T2 + 1024
L_SLOT = 16384
assert L_T3 + 256 <= L_SLOT
S_HEAD, S_W = 3, 4
WS = 8
TS = 12
S_STEP = 16
S_KX, S_VX, S_KM = 17, 18, 19
S_PL = 20
S_PS = 24
S_MRD = 27
S_MWR, S_MPO = 30, 31
M_HI0, M_MMV, M_H1S = 32, 34, 36
S_C = 40
S_SPIN = 41
S_T = 42
S_PDELTA = 48
S_PFK, S_PFV = 49, 50
S_FLAG = 51
S_KN = 55
S_T0 = 52

LDSQ = (8, 0)
LDSK = (1, 2)
LDSV = (3, 7)
SLOT = {("q", LDSQ[0]): 0, ("q", LDSQ[1]): 1, ("k", LDSK[0]): 2, ("k", LDSK[1]): 3, ("v", LDSV[0]): 4, ("v", LDSV[1]): 5,
        ("o8", 0): 6, ("o3", 0): 7, ("o3", 1): 8}

def pieces():
    P = []
    for m, lds in (("q", LDSQ), ("k", LDSK), ("v", LDSV)):
        for kc in range(9):
            if kc not in lds: P.append((m, kc))
    for u in range(3):
        for kc in range(2):
            P.append((f"o{u}", kc))
    res = sorted(SLOT.items(), key=lambda x: x[1])
    for k, sl in res: P.append(k)
    assert len(P) == 36
    return P

def frag_regs():
    F = {}
    i = 0
    for (m, kc) in pieces()[:27]:
        for t in range(2):
            F[(m, kc, t)] = 80 + 8 * i if i < 22 else 256 + 8 * (i - 22)
            i += 1
    assert i == 54
    return F
FR = frag_regs()

def own(w):
    return [w, w + 4, 8]

def smf(d, a_, b):
    return f"v_smfmac_f32_16x16x64_bf16 {v(d,4)}, {a_}, {r(b,8)}, {v(IDX)}"

def lds_frag_addr(w, slot, t):
    return L_SLOT + slot * 16384 + w * 4096 + t * 2048

def lds_frag_load(B, w, slot, t, LB, after=(), bias=0):
    ad = lds_frag_addr(w, slot, t)
    win = ad // 65536 * 65536
    off = ad - win
    if win == 0:
        n1 = B(f"ds_read_b128 {v(LB,4)}, {v(P1)} offset:{off}", after=after, bias=bias)
        n2 = B(f"ds_read_b128 {v(LB+4,4)}, {v(P1)} offset:{off+1024}", after=after, bias=bias)
    else:
        B(f"v_add_u32 {v(LB+4)}, {win}, {v(P1)}", after=after, bias=bias)
        n1 = B(f"ds_read_b128 {v(LB,4)}, {v(LB+4)} offset:{off}", bias=bias)
        n2 = B(f"ds_read_b128 {v(LB+4,4)}, {v(LB+4)} offset:{off+1024}", bias=bias)
    return n1, n2

def zero(B, reg, n, **kw):
    out = []
    for i in range(0, n, 2):
        out.append(B(f"v_mov_b64 {v(reg+i,2)}, 0", **kw))
    return out

def fold_tile(B, T):
    B(f"v_permlane32_swap_b32 {v(T)}, {v(T+2)}")
    B(f"v_permlane32_swap_b32 {v(T+1)}, {v(T+3)}")
    B(f"v_pk_add_f32 {v(T,2)}, {v(T,2)}, {v(T+2,2)}")


def main_region(w, st):
    from sched import Node
    B = Block()
    ow = own(w)
    oth = [kc for kc in range(9) if kc not in ow]
    ext = [Node(f"ds_read_b128 {v(LB0,4)}, {v(P1)}"), Node(f"ds_read_b128 {v(LB0+4,4)}, {v(P1)}"),
           Node(f"ds_read_b128 {v(LB1,4)}, {v(P1)}"), Node(f"ds_read_b128 {v(LB1+4,4)}, {v(P1)}")]
    ext_w = [Node(f"ds_write_b128 {v(P1)}, {v(MA+4*kc,4)} offset:{kc*1024}") for kc in (w, w + 4)]
    mA = lambda kc: v(MA + 4 * kc, 4)
    b1 = B("s_barrier", name="B1", bias=0, minready=70)
    b1.wait_done = ext_w
    b1.ext_only = True
    for kc in oth:
        B(f"ds_read_b128 {mA(kc)}, {v(P1)} offset:{L_M + kc*1024}", after=[b1])
    def acc(m, t): return {"q": QA, "k": KA, "v": VA}[m] + 4 * t
    def mm(m, kc, t, breg=None):
        b = FR[(m, kc, t)] if breg is None else breg
        if m == "v":
            return B(smf(acc(m, t), mA(kc), b))
        return B(smf(acc(m, t), mA(kc), b), rd=["pj"], wr=["pj"])
    qa, qb = LDSQ; ka, kb = LDSK; va, vb = LDSV
    assert qa in ow
    for kc in ow:
        if kc == qa:
            mm("q", kc, 0, LB0); mm("q", kc, 1, LB1)
            lds_frag_load(B, w, SLOT[("q", qb)], 0, LB0)
            lds_frag_load(B, w, SLOT[("q", qb)], 1, LB1)
    for kc in ow:
        if kc not in (qa, qb):
            mm("q", kc, 0); mm("q", kc, 1)
        if kc not in (ka, kb):
            mm("k", kc, 0); mm("k", kc, 1)
    rest = [kc for kc in oth if kc != qb]
    half = len(rest) // 2
    for kc in rest[:half]:
        mm("q", kc, 0); mm("q", kc, 1)
    mm("q", qb, 0, LB0); mm("q", qb, 1, LB1)
    lds_frag_load(B, w, SLOT[("k", ka)], 0, LB0)
    lds_frag_load(B, w, SLOT[("k", kb)], 0, LB1)
    for kc in rest[half:]:
        mm("q", kc, 0); mm("q", kc, 1)
    fold_tile(B, QA); fold_tile(B, QA + 4)
    B(f"v_cvt_pk_bf16_f32 {v(QA)}, {v(QA)}, {v(QA+1)}")
    B(f"v_cvt_pk_bf16_f32 {v(QA+1)}, {v(QA+4)}, {v(QA+5)}")
    B(f"v_mfma_f32_16x16x16_bf16 {v(QA+4,4)}, {v(QA,2)}, {v(PERM,2)}, 0")
    B(f"v_cvt_pk_bf16_f32 {v(QA+2)}, {v(QA+4)}, {v(QA+5)}")
    B(f"v_cvt_pk_bf16_f32 {v(QA+3)}, {v(QA+6)}, {v(QA+7)}")
    B(f"v_mov_b32_dpp {v(QA+4)}, {v(QA+2)} row_ror:8 row_mask:0xf bank_mask:0xf")
    B(f"v_mov_b32_dpp {v(QA+5)}, {v(QA+3)} row_ror:8 row_mask:0xf bank_mask:0xf")
    sx0 = B(f"v_mfma_f32_16x16x32_bf16 {v(VA,4)}, {v(VA,4)}, {v(QA+2,4)}, 0")
    sx1 = B(f"v_mfma_f32_16x16x32_bf16 {v(VA+4,4)}, {v(VA+4,4)}, {v(QA+2,4)}, 0")
    B(f"v_lshrrev_b32 {v(QA)}, 2, {v(P1)}")
    adds = []
    for i in range(4):
        B(f"v_cndmask_b32 {v(VA+i)}, {v(VA+4+i)}, {v(VA+i)}, {s(M_HI0,2)}")
    for i in range(4):
        adds.append(B(f"ds_add_f32 {v(QA)}, {v(VA+i)} offset:{L_SC + i*256}"))
    B(f"buffer_load_dwordx4 {v(QA+4,4)}, {v(P1)}, {s(WS,4)}, {s(S_VX)} offen offset:1024")
    B(f"ds_read_b32 {v(QA+1)}, {v(P1)} offset:{L_T0}")
    kreg = [kc for kc in oth if kc not in (ka, kb)]
    mm("k", kreg[0], 0)
    mm("k", ka, 0, LB0); mm("k", kb, 0, LB1)
    lds_frag_load(B, w, SLOT[("k", ka)], 1, LB0)
    lds_frag_load(B, w, SLOT[("k", kb)], 1, LB1)
    for kc in kreg[1:]: mm("k", kc, 0)
    fold_tile(B, KA)
    B(f"v_cvt_pk_bf16_f32 {v(KA)}, {v(KA)}, {v(KA+1)}")
    nk1 = len(kreg)
    for kc in kreg[:nk1 - 2]: mm("k", kc, 1)
    mm("k", ka, 1, LB0); mm("k", kb, 1, LB1)
    lds_frag_load(B, w, SLOT[("v", va)], 0, LB0)
    lds_frag_load(B, w, SLOT[("v", va)], 1, LB1)
    for kc in kreg[nk1 - 2:]: mm("k", kc, 1)
    fold_tile(B, KA + 4)
    B(f"v_cvt_pk_bf16_f32 {v(KA+1)}, {v(KA+4)}, {v(KA+5)}")
    B(f"v_mfma_f32_16x16x16_bf16 {v(KA+4,4)}, {v(KA,2)}, {v(PERM,2)}, 0")
    B(f"v_cvt_pk_bf16_f32 {v(KA+2)}, {v(KA+4)}, {v(KA+5)}")
    B(f"v_cvt_pk_bf16_f32 {v(KA+3)}, {v(KA+6)}, {v(KA+7)}")
    smm = B(f"v_mfma_f32_16x16x16_bf16 {v(KA+4,4)}, {v(KA+2,2)}, {v(QA+2,2)}, 0")
    addm = B([f"s_mov_b64 exec, {s(M_MMV,2)}"] +
             [f"ds_add_f32 {v(QA+1)}, {v(KA+4+i)} offset:{i*32}" for i in range(4)] +
             ["s_mov_b64 exec, -1"])
    adds.append(addm)
    B(f"buffer_load_dwordx4 {v(QA,4)}, {v(P1)}, {s(WS,4)}, {s(S_VX)} offen")
    uld = B.nodes[-1]
    B(f"v_and_b32 {v(KA)}, 0xf0, {v(P1)}", bias=-300)
    B(f"v_lshlrev_b32 {v(KA)}, 3, {v(KA)}", bias=-300)
    B(f"buffer_load_dword {v(KA)}, {s(WS,4)}, {s(S_PFK)} offen lds", after=[uld], bias=-300)
    B(f"buffer_load_dword {v(KA)}, {s(WS,4)}, {s(S_PFV)} offen lds", after=[uld], bias=-300)
    b2 = B("s_barrier", wait_done=adds, name="B2")
    zero(B, VA, 8)
    def vv(kc, l=False):
        mm("v", kc, 0, LB0 if l else None); mm("v", kc, 1, LB1 if l else None)
    assert (va, vb) == (3, 7)
    vv(0); vv(1); vv(2); vv(3, True)
    lds_frag_load(B, w, SLOT[("v", vb)], 0, LB0)
    lds_frag_load(B, w, SLOT[("v", vb)], 1, LB1)
    vv(4); vv(5); vv(6); vv(7, True); vv(8)
    fold_tile(B, VA); fold_tile(B, VA + 4)
    B(f"v_cvt_pk_bf16_f32 {v(KA+4)}, {v(VA)}, {v(VA+5)}")
    B(f"v_cvt_pk_bf16_f32 {v(KA+5)}, {v(VA+4)}, {v(VA+1)}")
    pub = B(f"buffer_store_dwordx4 {v(KA+2,4)}, {v(P1)}, {s(WS,4)}, {s(S_KM)} offen sc1", bias=-300)
    X = MA
    B(f"ds_read_b32 {v(X+5)}, {v(P1)} offset:{L_T0+4}")
    B(f"v_lshrrev_b32 {v(X+6)}, 2, {v(P1)}")
    B(f"ds_read2st64_b32 {v(X,2)}, {v(X+6)} offset0:{L_SC//256} offset1:{L_SC//256+1}", after=[b2])
    B(f"ds_read2st64_b32 {v(X+2,2)}, {v(X+6)} offset0:{L_SC//256+2} offset1:{L_SC//256+3}", after=[b2])
    B(f"ds_read_b32 {v(X+4)}, {v(X+5)}", after=[b2])
    M = X + 5; T = X + 6
    B(f"v_max3_f32 {v(M)}, {v(X)}, {v(X+1)}, {v(X+2)}")
    B(f"v_max3_f32 {v(M)}, {v(M)}, {v(X+3)}, {v(X+4)}")
    B(f"v_max_f32_dpp {v(M)}, {v(M)}, {v(M)} row_ror:8 row_mask:0xf bank_mask:0xf")
    B(f"v_mov_b32 {v(T)}, {v(M)}")
    B(f"v_permlane16_swap_b32 {v(M)}, {v(T)}")
    B(f"v_max_f32 {v(M)}, {v(M)}, {v(T)}")
    B(f"v_mov_b32 {v(T)}, {v(M)}")
    B(f"v_permlane32_swap_b32 {v(M)}, {v(T)}")
    B(f"v_max_f32 {v(M)}, {v(M)}, {v(T)}")
    B(f"v_mul_f32 {v(M)}, {s(S_C)}, {v(M)}")
    for i in range(5):
        B(f"v_fma_f32 {v(X+i)}, {v(X+i)}, {s(S_C)}, -{v(M)}")
    for i in range(5):
        B(f"v_exp_f32 {v(X+i)}, {v(X+i)}")
    BP = X + 12; BU = X + 8; BW = X + 10
    B(f"v_cvt_pk_bf16_f32 {v(M)}, {v(X)}, {v(X+1)}")
    B(f"v_cvt_pk_bf16_f32 {v(T)}, {v(X+2)}, {v(X+3)}")
    B(f"v_cndmask_b32 {v(BP)}, 0, {v(M)}, {s(M_HI0,2)}")
    B(f"v_cndmask_b32 {v(BP+1)}, 0, {v(T)}, {s(M_HI0,2)}")
    B(f"v_cndmask_b32 {v(BP+2)}, {v(M)}, 0, {s(M_HI0,2)}")
    B(f"v_cndmask_b32 {v(BP+3)}, {v(T)}, 0, {s(M_HI0,2)}")
    B(f"v_mov_b32 {v(BU+1)}, 0")
    B(f"v_cndmask_b32 {v(BW)}, 16, 0, {s(M_HI0,2)}")
    B(f"v_cvt_pk_bf16_f32 {v(X+7)}, {v(X+4)}, 0")
    B(f"v_lshlrev_b32 {v(BU)}, {v(BW)}, {v(X+7)}")
    B(f"v_lshlrev_b32 {v(BW+1)}, {v(BW)}, {v(X+7)}")
    B(f"v_mov_b32 {v(BW)}, 0")
    U = QA; W = QA + 4
    B(f"v_mfma_f32_16x16x32_bf16 {v(U,4)}, {v(U,4)}, {v(BP,4)}, 0")
    B(f"v_mfma_f32_16x16x32_bf16 {v(W,4)}, {v(W,4)}, {v(BP,4)}, 0")
    B(f"v_mfma_f32_16x16x16_bf16 {v(U,4)}, {v(KA+4,2)}, {v(BU,2)}, {v(U,4)}")
    B(f"v_mfma_f32_16x16x16_bf16 {v(W,4)}, {v(KA+4,2)}, {v(BW,2)}, {v(W,4)}")
    B(f"v_pk_add_f32 {v(X,2)}, {v(X,2)}, {v(X+2,2)}")
    B(f"v_add_f32 {v(X)}, {v(X)}, {v(X+1)}")
    B(f"v_add_f32 {v(X)}, {v(X)}, {v(X+4)}")
    B(f"v_add_f32_dpp {v(X)}, {v(X)}, {v(X)} row_ror:8 row_mask:0xf bank_mask:0xf")
    B(f"v_mov_b32 {v(X+1)}, {v(X)}")
    B(f"v_permlane16_swap_b32 {v(X)}, {v(X+1)}")
    B(f"v_add_f32 {v(X)}, {v(X)}, {v(X+1)}")
    B(f"v_mov_b32 {v(X+1)}, {v(X)}")
    B(f"v_permlane32_swap_b32 {v(X)}, {v(X+1)}")
    B(f"v_add_f32 {v(X)}, {v(X)}, {v(X+1)}")
    B(f"v_rcp_f32 {v(X)}, {v(X)}")
    B(f"ds_read_b32 {v(X+7)}, {v(P1)} offset:{L_T0+8}")
    for i in range(4):
        B(f"v_add_f32_dpp {v(U+i)}, {v(W+i)}, {v(U+i)} row_ror:8 row_mask:0xf bank_mask:0xf")
    B(f"v_pk_mul_f32 {v(U,2)}, {v(U,2)}, {v(X,2)} op_sel_hi:[1,0]")
    B(f"v_pk_mul_f32 {v(U+2,2)}, {v(U+2,2)}, {v(X,2)} op_sel_hi:[1,0]")
    B(f"v_cvt_pk_bf16_f32 {v(U)}, {v(U)}, {v(U+1)}")
    B(f"v_cvt_pk_bf16_f32 {v(U+1)}, {v(U+2)}, {v(U+3)}")
    ow_ = B(f"ds_write_b64 {v(X+7)}, {v(U,2)} offset:{w*512}")
    b3 = B("s_barrier", wait_done=[ow_], name="B3")
    OA = MA
    B(f"ds_read_b128 {v(OA,4)}, {v(P1)} offset:{L_O}", after=[b3])
    B(f"ds_read_b128 {v(OA+4,4)}, {v(P1)} offset:{L_O+1024}", after=[b3])
    B(f"ds_read_b32 {v(QA+4)}, {v(P1)} offset:{L_T0+12}")
    B(f"v_lshrrev_b32 {v(QA+6)}, 2, {v(P1)}", bias=-100)
    B(f"ds_read_b32 {v(QA+5)}, {v(QA+6)} offset:{L_T3}")
    B(f"v_mov_b32 {v(QA+7)}, 0", bias=-200)
    zs = [B(f"ds_write_b32 {v(QA+6)}, {v(QA+7)} offset:{L_SC + w*256}", after=[b3], bias=-200)]
    if w == 0:
        zs.append(B(f"ds_write_b32 {v(QA+6)}, {v(QA+7)} offset:{L_MM}", after=[b3], bias=-200))
    ACC = {0: 8, 1: 12, 2: 16, 3: 20, 4: 24, 5: 28, 8: 32, 6: KA, 7: KA + 4}
    for t in (8, 0, 1, 2, 3, 4, 5):
        zero(B, ACC[t], 4)
    zero(B, KA, 8)
    def wo(tile, kc, breg=None):
        b = FR[(f"o{tile>>1}", kc, tile & 1)] if breg is None else breg
        return B(smf(ACC[tile], v(OA + 4 * kc, 4), b), rd=["wo"], wr=["wo"])
    def pair_out(ta, tb, u):
        A_, B_ = ACC[ta], ACC[tb]
        for i in range(4):
            B(f"v_permlane32_swap_b32 {v(A_+i)}, {v(B_+i)}")
        B(f"v_pk_add_f32 {v(A_,2)}, {v(A_,2)}, {v(B_,2)}")
        B(f"v_pk_add_f32 {v(A_+2,2)}, {v(A_+2,2)}, {v(B_+2,2)}")
        B(f"v_cvt_pk_bf16_f32 {v(A_)}, {v(A_)}, {v(A_+1)}")
        B(f"v_cvt_pk_bf16_f32 {v(A_+1)}, {v(A_+2)}, {v(A_+3)}")
        B(f"buffer_store_dwordx2 {v(A_,2)}, {v(QA+4)}, {s(WS,4)}, {s(S_PS + (u>>1))} offen offset:{(u&1)*2048} {st}")
    lds_frag_load(B, w, SLOT[("o8", 0)], 0, LB0)
    lds_frag_load(B, w, SLOT[("o8", 0)], 1, LB1)
    lds_frag_load(B, w, SLOT[("o3", 1)], 0, VA)
    wo(8, 0, LB0); wo(8, 1, LB1)
    lds_frag_load(B, w, SLOT[("o3", 0)], 0, LB0)
    lds_frag_load(B, w, SLOT[("o3", 0)], 1, LB1)
    fold_tile(B, ACC[8])
    B(f"v_cvt_pk_bf16_f32 {v(ACC[8])}, {v(ACC[8])}, {v(ACC[8]+1)}")
    B(f"buffer_store_dword {v(ACC[8])}, {v(QA+5)}, {s(WS,4)}, {s(S_PS+2)} offen {st}")
    wo(0, 0); wo(1, 0); wo(0, 1); wo(1, 1)
    pair_out(0, 1, 0)
    wo(2, 0); wo(3, 0)
    wo(6, 0, LB0); wo(7, 0, LB1)
    lds_frag_load(B, w, SLOT[("o3", 1)], 1, LB0)
    wo(2, 1); wo(3, 1)
    pair_out(2, 3, 1)
    w61 = wo(6, 1, VA); wo(4, 0); wo(7, 1, LB0)
    B(f"buffer_load_dwordx4 {v(VA,4)}, {v(P1)}, {s(WS,4)}, {s(S_KN)} offen", bias=-50)
    B(f"buffer_load_dwordx4 {v(VA+4,4)}, {v(P1)}, {s(WS,4)}, {s(S_KN)} offen offset:1024", bias=-50)
    if w < 3:
        B(f"ds_read_b128 {v(QA,4)}, {v(P1)} offset:{L_T2}", after=[ow_], bias=-50)
        B(f"v_mov_b32 {v(QA+7)}, -1", after=zs, bias=-50)
        B([f"s_mov_b64 exec, {s(M_H1S,2)}",
           f"buffer_store_dword {v(QA+7)}, {v(QA+1+w)}, {s(WS,4)}, {s(S_MPO)} offen {st}",
           "s_mov_b64 exec, -1"], bias=-50)
    pair_out(6, 7, 3)
    wo(5, 0); wo(4, 1); wo(5, 1)
    pair_out(4, 5, 2)
    return B, ext + ext_w, zs


S_RDB = 72
SRD_Q, SRD_K, SRD_V, SRD_O = 56, 60, 64, 68
JUNK = L_T3 + 256
DBG_BAR, DBG_XMAX, DBG_XMIN, DBG_PROG = 0, 4, 8, 128
SPIN_BUDGET = 400000

def srd(P, dst, ka_off, nbytes, tmp=42):
    P(f"s_load_dwordx2 {s(dst,2)}, s[0:1], {ka_off}")
    P(f"s_mov_b32 {s(dst+2)}, {nbytes}")
    P(f"s_mov_b32 {s(dst+3)}, 0x00020000")

def lane_consts(P):
    P("""v_and_b32 v1, 63, v0
         v_and_b32 v2, 15, v1
         v_lshrrev_b32 v3, 4, v1
         v_and_b32 v4, 7, v2
         v_lshrrev_b32 v5, 3, v2
         v_and_b32 v6, 1, v3
         v_lshrrev_b32 v7, 1, v3""")

def emit_tables(P):
    P(f"v_lshlrev_b32 {v(P1)}, 4, v1")
    P(f"v_mov_b32 {v(IDX)}, 0x4444")
    P(f"v_mov_b32 v8, 0xeeee")
    P(f"v_cmp_gt_u32 vcc, 8, v2")
    P(f"v_cndmask_b32 {v(IDX)}, v8, {v(IDX)}, vcc")
    P("v_lshlrev_b32 v8, 2, v6\n v_lshl_add_u32 v8, v7, 1, v8")
    P("v_mov_b32 v9, 0x3f80\n v_mov_b32 v10, 0x3f800000")
    for h in range(2):
        P(f"v_add_u32 v11, {8*h}, v8")
        P(f"v_cmp_eq_u32 vcc, v11, v2")
        P(f"v_cndmask_b32 {v(PERM+h)}, 0, v9, vcc")
        P(f"v_add_u32 v11, 1, v11")
        P(f"v_cmp_eq_u32 vcc, v11, v2")
        P(f"v_cndmask_b32 {v(PERM+h)}, {v(PERM+h)}, v10, vcc")
    P(f"v_lshlrev_b32 v11, 2, v4")
    P(f"v_lshl_add_u32 v12, v6, 7, v11\n v_add_u32 v12, {L_MM}, v12")
    P(f"v_add_u32 v13, v8, v5\n v_lshl_add_u32 v13, v13, 5, v11\n v_add_u32 v13, {L_MM}, v13")
    P(f"v_lshlrev_b32 v14, 8, v5\n v_lshl_add_u32 v14, v7, 7, v14\n v_lshl_add_u32 v14, v4, 4, v14\n v_lshl_add_u32 v14, v6, 3, v14\n v_add_u32 v14, {L_O}, v14")
    P(f"v_lshl_add_u32 v15, v7, 6, v2\n v_lshlrev_b32 v15, 4, v15\n v_lshl_add_u32 v15, v6, 3, v15")
    P(f"ds_write_b128 {v(P1)}, v[12:15] offset:{L_T0}")
    P("v_and_b32 v8, 1, v2\n v_lshlrev_b32 v8, 4, v8\n v_lshlrev_b32 v8, v8, v9")
    P("v_lshrrev_b32 v11, 1, v4")
    for rr in range(4):
        P(f"v_cmp_eq_u32 vcc, {rr}, v11\n v_cndmask_b32 v{16+rr}, 0, v8, vcc")
    P(f"ds_write_b128 {v(P1)}, v[16:19] offset:{L_T1}")
    P(f"s_mul_i32 s42, {s(S_HEAD)}, 18")
    P("v_lshrrev_b32 v8, 2, v2\n v_min_u32 v8, 2, v8")
    P("v_and_b32 v9, 1, v2")
    P("v_lshl_add_u32 v8, v8, 1, v9\n v_add_u32 v8, s42, v8\n v_lshlrev_b32 v8, 4, v8")
    P("v_bfe_u32 v9, v2, 1, 1\n v_lshl_add_u32 v9, v3, 1, v9")
    P("v_mul_u32_u24 v9, 9216, v9\n v_add_u32 v20, v8, v9")
    P("v_min_u32 v8, 2, v3\n v_lshlrev_b32 v8, 1, v8\n v_add_u32 v8, s42, v8")
    for ww in range(3):
        P(f"v_add_u32 v9, {6*ww}, v8")
        P(f"v_lshrrev_b32 v10, 3, v9\n v_lshlrev_b32 v10, 7, v10\n v_lshl_add_u32 v10, v4, 4, v10")
        P(f"v_and_b32 v9, 7, v9\n v_lshl_add_u32 v{21+ww}, v9, 1, v10")
    P(f"ds_write_b128 {v(P1)}, v[20:23] offset:{L_T2}")
    P("v_lshlrev_b32 v8, 4, v2\n v_lshl_add_u32 v8, v6, 3, v8\n v_lshl_add_u32 v8, v7, 2, v8")
    P(f"v_lshlrev_b32 v9, 2, v1\n ds_write_b32 v9, v8 offset:{L_T3}")
    P("v_mov_b32 v8, 0")
    for i in range(5):
        P(f"ds_write_b32 v9, v8 offset:{L_SC + 256*i}")

def emit_weight_fill(P):
    PC = pieces()
    P("v_lshrrev_b32 v8, 4, v1\n v_and_b32 v9, 15, v1")
    P(f"s_and_b32 s42, {s(S_W)}, 3\n s_lshl_b32 s42, s42, 1")
    P("v_and_b32 v10, 1, v8\n v_or_b32 v10, s42, v10")
    P("v_lshrrev_b32 v11, 1, v9\n v_xor_b32 v11, v11, v10")
    P("v_and_b32 v12, 1, v9\n v_lshlrev_b32 v12, 4, v12")
    P(f"s_lshl_b32 s43, {s(S_W)}, 2\n v_add_u32 v8, s43, v8")
    P("v_lshl_add_u32 v13, v11, 5, v12")
    P("v_lshl_add_u32 v24, v8, 13, v13")
    P("v_mul_u32_u24 v14, 1152, v8\n v_add_u32 v25, v14, v13")
    P("v_lshrrev_b32 v15, 2, v11\n v_mul_u32_u24 v15, 73728, v15")
    P("v_and_b32 v11, 3, v11\n v_lshl_add_u32 v11, v11, 5, v12\n v_add3_u32 v26, v14, v15, v11\n v_add_u32 v26, 1024, v26")
    P("v_bfe_u32 v8, v1, 2, 2\n v_and_b32 v9, 3, v1")
    P("v_and_b32 v10, 1, v8\n v_lshrrev_b32 v11, 1, v8")
    P("v_lshl_add_u32 v12, v11, 3, v10\n v_lshl_add_u32 v12, v6, 2, v12\n v_lshl_add_u32 v12, v7, 4, v12")
    P("v_lshl_add_u32 v13, v6, 1, v10\n v_lshl_add_u32 v13, v11, 2, v13")
    P("v_lshlrev_b32 v12, 8, v12\n v_lshl_add_u32 v12, v9, 3, v12")
    P(f"v_add_u32 v12, {L_SLOT}, v12")
    for t in range(2):
        P(f"s_lshl_b32 s42, {s(S_W)}, 1\n s_add_u32 s42, s42, {t}")
        P(f"v_xor_b32 v14, s42, v13\n v_lshl_add_u32 v{27+t}, v14, 5, v12")
        P(f"s_add_u32 s42, {s(S_W)}, {4*t}")
        P(f"v_xor_b32 v14, s42, v13\n v_lshl_add_u32 v{29+t}, v14, 5, v12")
    P(f"s_lshl_b32 s44, {s(S_HEAD)}, 8")
    P(f"s_mul_i32 s45, {s(S_HEAD)}, 147456")
    P(f"s_lshl_b32 s46, {s(S_W)}, 10\n s_add_u32 s46, s46, {L_SLOT}")
    def dma(p):
        m, kc = PC[p]
        sl = p % 9
        for j in range(4):
            P(f"s_add_u32 m0, s46, {sl*16384 + j*4096}")
            if m in "qkv":
                sr = {"q": SRD_Q, "k": SRD_K, "v": SRD_V}[m]
                P(f"s_add_u32 s47, s44, {(64*kc + 16*j)*8192}")
                P(f"buffer_load_dwordx4 v24, {s(sr,4)}, s47 offen lds")
            elif m == "o8":
                P(f"s_add_u32 s47, s45, {16*j*1152}")
                P(f"buffer_load_dwordx4 v26, {s(SRD_O,4)}, s47 offen lds")
            else:
                u = int(m[1])
                P(f"s_add_u32 s47, s45, {(64*kc + 16*j)*1152 + u*256}")
                P(f"buffer_load_dwordx4 v25, {s(SRD_O,4)}, s47 offen lds")
    for p in range(9): dma(p)
    TMP = (36, 52)
    def writeback(p):
        sl = p % 9
        tb = TMP[p & 1]
        P(f"s_lshl_b32 s42, {s(S_W)}, 12\n s_add_u32 s42, s42, {L_SLOT + sl*16384}")
        P(f"v_add_u32 v31, s42, {v(P1)}")
        for t in range(2):
            for hf in range(2):
                P(f"ds_write_b128 v31, {v(tb + 8*t + 4*hf, 4)} offset:{t*2048 + hf*1024}")
    for p in range(36):
        m, kc = PC[p]
        sl = p % 9
        last = 8 if p == 0 else min(p + 7, 35)
        P(f"s_waitcnt vmcnt({4*(last - p)}) lgkmcnt(0)")
        P("s_barrier")
        if p >= 1 and p + 8 <= 35: dma(p + 8)
        if p - 1 >= 27: writeback(p - 1)
        base = (27, 28) if m in "qkv" else (29, 30)
        for t in range(2):
            P(f"v_add_u32 v{32+t}, {sl*16384}, v{base[t]}")
        for t in range(2):
            dst = FR[(m, kc, t)] if p < 27 else TMP[p & 1] + 8 * t
            for hf in range(2):
                for sb in range(2):
                    P(f"ds_read_b64_tr_b16 {r(dst + 4*hf + 2*sb, 2)}, v{32+t} offset:{sb*512 + hf*8192}")
    P("s_waitcnt lgkmcnt(0)")
    P("s_barrier")
    writeback(35)
    P("s_waitcnt lgkmcnt(0)")

def emit_init_rings(P):
    P(f"s_mul_i32 s42, {s(S_HEAD)}, 18")
    P("v_add_u32 v8, s42, v0")
    P("v_and_b32 v9, 7, v8\n v_lshrrev_b32 v10, 3, v8")
    P("v_mul_u32_u24 v9, 1152, v9\n v_lshl_add_u32 v9, v10, 4, v9")
    P("v_lshlrev_b32 v8, 4, v8")
    P("v_mov_b32 v16, -1\n v_mov_b32 v17, -1\n v_mov_b32 v18, -1\n v_mov_b32 v19, -1")
    P("v_cmp_gt_u32 vcc, 18, v0\n s_and_saveexec_b64 s[42:43], vcc")
    lab = P.newlabel("CH_NOM")
    P(f"s_cbranch_execz {lab}")
    P(f"buffer_load_dwordx4 v[12:15], v9, {s(TS,4)}, 0 offen")
    P(f"s_mov_b32 s44, {MR_OFF + MR_SLOT}")
    P(f"buffer_store_dwordx4 v[16:19], v8, {s(WS,4)}, s44 offen sc1")
    P(f"s_mov_b32 s44, {MR_OFF}")
    P("s_waitcnt vmcnt(1)")
    P(f"buffer_store_dwordx4 v[12:15], v8, {s(WS,4)}, s44 offen sc1")
    P.label(lab)
    P("s_mov_b64 exec, s[42:43]")
    P("v_lshlrev_b32 v8, 4, v0")
    P(f"s_mul_i32 s44, {s(S_HEAD)}, 9216\n s_add_u32 s44, s44, {PART_OFF}")
    for sl in range(2):
        for k in range(2):
            P(f"s_add_u32 s45, s44, {sl*PART_SLOT + k*4096}")
            P(f"buffer_store_dwordx4 v[16:19], v8, {s(WS,4)}, s45 offen sc1")
    P("v_cmp_gt_u32 vcc, 64, v0\n s_and_saveexec_b64 s[42:43], vcc")
    lab = P.newlabel("CH_NOP")
    P(f"s_cbranch_execz {lab}")
    for sl in range(2):
        P(f"s_add_u32 s45, s44, {sl*PART_SLOT + 8192}")
        P(f"buffer_store_dwordx4 v[16:19], v8, {s(WS,4)}, s45 offen sc1")
    P.label(lab)
    P("s_mov_b64 exec, s[42:43]")

def emit_group_barrier(P, DBG, force_slow=False):
    P("s_waitcnt vmcnt(0) lgkmcnt(0)")
    P("s_barrier")
    l1 = P.newlabel("CH_GB")
    P(f"s_cmp_lg_u32 {s(S_W)}, 0")
    P(f"s_cbranch_scc1 {l1}_w")
    P("s_getreg_b32 s42, hwreg(HW_REG_XCC_ID)\n s_and_b32 s42, s42, 15")
    P("s_add_u32 s43, s42, 1\n s_sub_u32 s44, 16, s42")
    P("v_mov_b32 v8, s43\n v_mov_b32 v9, s44\n v_mov_b32 v10, 1\n v_mov_b32 v11, 0")
    P("s_mov_b64 exec, 1")
    P(f"buffer_atomic_umax v8, v11, {s(DBG,4)}, 0 offen offset:{DBG_XMAX} sc1")
    P(f"buffer_atomic_umax v9, v11, {s(DBG,4)}, 0 offen offset:{DBG_XMIN} sc1")
    P("s_waitcnt vmcnt(0)")
    P(f"buffer_atomic_add v10, v11, {s(DBG,4)}, 0 offen offset:{DBG_BAR} sc1")
    P.label(f"{l1}_p")
    P(f"buffer_load_dword v8, v11, {s(DBG,4)}, 0 offen offset:{DBG_BAR} sc1")
    P("s_waitcnt vmcnt(0)")
    P("v_readfirstlane_b32 s42, v8")
    P("s_cmp_ge_u32 s42, 32")
    P(f"s_cbranch_scc1 {l1}_d")
    P(f"s_sub_u32 {s(S_SPIN)}, {s(S_SPIN)}, 1")
    P(f"s_cbranch_scc0 {l1}_p")
    P(f"s_mov_b32 {s(S_SPIN)}, 0")
    P.label(f"{l1}_d")
    P("s_mov_b64 exec, -1")
    P.label(f"{l1}_w")
    P("s_barrier")
    P("v_mov_b32 v11, 0")
    P(f"buffer_load_dword v8, v11, {s(DBG,4)}, 0 offen offset:{DBG_XMAX} sc1")
    P(f"buffer_load_dword v9, v11, {s(DBG,4)}, 0 offen offset:{DBG_XMIN} sc1")
    P("s_waitcnt vmcnt(0)")
    P("v_readfirstlane_b32 s42, v8\n v_readfirstlane_b32 s43, v9")
    P("s_add_u32 s42, s42, s43")
    P("s_cmp_eq_u32 s42, 17")
    if force_slow: P("s_cmp_eq_u32 s42, 0")

def emit_poll(P, w, lab):
    ow = own(w)
    oth = [kc for kc in range(9) if kc not in ow]
    T = MA + 4 * oth[0]
    P.label(lab)
    for i, kc in enumerate(ow):
        P(f"buffer_load_dwordx4 {v(MA+4*kc,4)}, {v(P1)}, {s(WS,4)}, {s(S_MRD+i)} offen sc1")
    P("s_waitcnt vmcnt(2)")
    P(f"ds_write_b128 {v(P1)}, {v(MA+4*ow[0],4)} offset:{L_M + ow[0]*1024}")
    a0 = MA + 4 * ow[0]; a1 = MA + 4 * ow[1]; a2 = MA + 4 * ow[2]
    P(f"v_max3_u32 {v(T)}, {v(a0)}, {v(a0+1)}, {v(a0+2)}")
    P("s_waitcnt vmcnt(1)")
    P(f"ds_write_b128 {v(P1)}, {v(a1,4)} offset:{L_M + ow[1]*1024}")
    P(f"v_max3_u32 {v(T)}, {v(T)}, {v(a0+3)}, {v(a1)}")
    P(f"v_max3_u32 {v(T)}, {v(T)}, {v(a1+1)}, {v(a1+2)}")
    P("s_waitcnt vmcnt(0)")
    P(f"v_max3_u32 {v(T+1)}, {v(a1+3)}, {v(a2)}, {v(a2+1)}")
    P(f"v_max3_u32 {v(T)}, {v(T)}, {v(a2+2)}, {v(a2+3)}")
    P(f"v_max_u32 {v(T)}, {v(T)}, {v(T+1)}")
    P(f"v_cmp_eq_u32 vcc, -1, {v(T)}")
    P(f"s_cbranch_vccz {lab}_ok")
    P(f"s_sub_u32 {s(S_SPIN)}, {s(S_SPIN)}, 1")
    P(f"s_cbranch_scc0 {lab}")
    P(f"s_mov_b32 {s(S_SPIN)}, 0")
    P.label(f"{lab}_ok")

def emit_hop1(P, w, st, lab):
    H1L = QA; H1S = QA + 1 + w
    D = 16; SEL = 20; PO = 24; T = 28
    P(f"ds_read_b128 {v(SEL,4)}, {v(P1)} offset:{L_T1}")
    P.label(lab)
    for i in range(4):
        P(f"buffer_load_dwordx4 {v(4*i,4)}, {v(H1L)}, {s(WS,4)}, {s(S_PL+i)} offen offset:{96*w} sc1")
    P(f"v_mov_b64 {v(PO,2)}, -1\n v_mov_b64 {v(PO+2,2)}, -1")
    P("s_waitcnt vmcnt(3) lgkmcnt(0)")
    P(f"v_mfma_f32_16x16x32_bf16 {v(D,4)}, v[0:3], {v(SEL,4)}, 0")
    P(f"v_max3_u32 {v(T)}, v0, v1, v2")
    P("s_waitcnt vmcnt(2)")
    P(f"v_mfma_f32_16x16x32_bf16 {v(D,4)}, v[4:7], {v(SEL,4)}, {v(D,4)}")
    P(f"v_max3_u32 {v(T)}, {v(T)}, v3, v4")
    P(f"v_max3_u32 {v(T)}, {v(T)}, v5, v6")
    P("s_waitcnt vmcnt(1)")
    P(f"v_mfma_f32_16x16x32_bf16 {v(D,4)}, v[8:11], {v(SEL,4)}, {v(D,4)}")
    P(f"v_max3_u32 {v(T)}, {v(T)}, v7, v8")
    P(f"v_max3_u32 {v(T)}, {v(T)}, v9, v10")
    P("s_waitcnt vmcnt(0)")
    P(f"v_mfma_f32_16x16x32_bf16 {v(D,4)}, v[12:15], {v(SEL,4)}, {v(D,4)}")
    P(f"v_max3_u32 {v(T+1)}, v11, v12, v13")
    P(f"v_max3_u32 {v(T)}, {v(T)}, v14, v15")
    P(f"v_max_u32 {v(T)}, {v(T)}, {v(T+1)}")
    P(f"v_cmp_eq_u32 vcc, -1, {v(T)}")
    P(f"s_cbranch_vccz {lab}_ok")
    P(f"s_sub_u32 {s(S_SPIN)}, {s(S_SPIN)}, 1")
    P(f"s_cbranch_scc0 {lab}")
    P(f"s_mov_b32 {s(S_SPIN)}, 0")
    P.label(f"{lab}_ok")
    P(f"v_pk_add_f32 {v(D,2)}, {v(D,2)}, {v(D+2,2)}")
    P(f"s_mov_b64 exec, {s(M_H1S,2)}")
    P(f"v_cvt_pk_bf16_f32 {v(D)}, {v(D)}, {v(D+1)}")
    P(f"buffer_store_dword {v(D)}, {v(H1S)}, {s(WS,4)}, {s(S_MWR)} offen {st}")
    P("s_mov_b64 exec, -1")
    for i in range(4):
        P(f"buffer_store_dwordx4 {v(PO,4)}, {v(H1L)}, {s(WS,4)}, {s(S_PL+i)} offen offset:{96*w} {st}")

def emit_lb_prefetch(P, w):
    sl = SLOT[("q", LDSQ[0])]
    for t, LB in ((0, LB0), (1, LB1)):
        ad = lds_frag_addr(w, sl, t)
        assert ad + 1024 < 65536
        P(f"ds_read_b128 {v(LB,4)}, {v(P1)} offset:{ad}")
        P(f"ds_read_b128 {v(LB+4,4)}, {v(P1)} offset:{ad+1024}")

def emit_post(P, w):
    for i in range(0, 8, 2):
        P(f"v_mov_b64 {v(QA+i,2)}, 0")
        P(f"v_mov_b64 {v(KA+i,2)}, 0")
    emit_lb_prefetch(P, w)
    for r_ in (S_KN, S_VX, S_PFK, S_PFV): P(f"s_add_u32 {s(r_)}, {s(r_)}, 8192")
    P(f"s_add_u32 {s(S_KM)}, {s(S_KM)}, 131072")
    for r_ in list(range(S_PL, S_PL + 4)) + list(range(S_PS, S_PS + 3)):
        P(f"s_add_u32 {s(r_)}, {s(r_)}, {s(S_PDELTA)}")
    P(f"s_sub_u32 {s(S_PDELTA)}, 0, {s(S_PDELTA)}")
    P(f"s_mov_b32 s42, {s(S_RDB)}")
    P(f"s_mov_b32 {s(S_RDB)}, {s(S_MWR)}")
    P(f"s_mov_b32 {s(S_MWR)}, {s(S_MPO)}")
    P(f"s_mov_b32 {s(S_MPO)}, s42")
    P(f"s_add_u32 {s(S_MRD)}, {s(S_RDB)}, {w*1024}")
    P(f"s_add_u32 {s(S_MRD+1)}, {s(S_RDB)}, {w*1024 + 4096}")
    P(f"s_add_u32 {s(S_MRD+2)}, {s(S_RDB)}, 8192")
    P(f"s_add_u32 {s(S_STEP)}, {s(S_STEP)}, 1")

STAMP = False
def stamp(P, i):
    if STAMP: P(f"s_memtime s[{84+2*i}:{85+2*i}]")

def emit_loop(P, w, st, tag, DBG, nsteps=64, stamps=None):
    lab = f"CH_{tag}{w}"
    P.label(lab)
    stamp(P, 0)
    emit_poll(P, w, lab + "_p2")
    stamp(P, 1)
    B, ext, zs = main_region(w, st)
    order = B.schedule()
    txt, vm, lg = insert_waits(order, vm_pending=[], lg_pending=[(set(n.writes), n) for n in ext])
    nb = 0
    for t in txt:
        P(t)
        if t == "s_barrier":
            nb += 1
            stamp(P, 1 + nb)
            if nb == 1 and w == 3:
                P(f"v_mov_b32 {v(MA+4*5)}, {s(S_STEP)}")
                P(f"v_mov_b32 {v(MA+4*5+1)}, 0")
                P("s_mov_b64 exec, 1")
                P(f"buffer_store_dword {v(MA+4*5)}, {v(MA+4*5+1)}, {s(DBG,4)}, {s(S_FLAG)} offen sc1")
                P("s_mov_b64 exec, -1")
    stamp(P, 5)
    if w < 3:
        emit_hop1(P, w, st, lab + "_p1")
    stamp(P, 6)
    if STAMP:
        P("s_waitcnt lgkmcnt(0)")
        for i in range(7): P(f"v_writelane_b32 v30, s{84+2*i}, {i}")
        P(f"v_writelane_b32 v30, {s(S_SPIN)}, 7")
        P(f"s_lshl_b32 s42, {s(S_HEAD)}, 2\n s_add_u32 s42, s42, {w}\n s_lshl_b32 s42, s42, 6\n s_add_u32 s42, s42, {s(S_STEP)}\n s_lshl_b32 s42, s42, 5\n s_add_u32 s42, s42, {DBGW_OFF}")
        P(f"v_lshrrev_b32 v31, 2, {v(P1)}")
        P("s_mov_b64 exec, 0xff")
        P(f"buffer_store_dword v30, v31, {s(WS,4)}, s42 offen")
        P("s_mov_b64 exec, -1")
    emit_post(P, w)
    P(f"s_cmp_lt_u32 {s(S_STEP)}, {nsteps}")
    P(f"s_cbranch_scc1 {lab}")
    P("s_branch CH_END")

def emit_chain(P, nsteps=64, force_slow=False):
    DBG = 76
    P(f"s_lshr_b32 {s(S_HEAD)}, s2, 3")
    P(f"v_lshrrev_b32 v1, 6, v0\n v_readfirstlane_b32 {s(S_W)}, v1")
    srd(P, WS, KA_WS, WS_SIZE)
    srd(P, TS, KA_MEM0, 9216)
    srd(P, SRD_Q, KA_WQ, 576 * 8192)
    srd(P, SRD_K, KA_WK, 576 * 8192)
    srd(P, SRD_V, KA_WV, 576 * 8192)
    srd(P, SRD_O, KA_WO, 32 * 147456)
    srd(P, DBG, KA_DBG, 256)
    P("s_memtime s[80:81]")
    P(f"s_mov_b32 {s(S_SPIN)}, {SPIN_BUDGET}")
    lane_consts(P)
    P("s_waitcnt lgkmcnt(0)")
    emit_init_rings(P)
    emit_tables(P)
    emit_weight_fill(P)
    def m64(d, val):
        P(f"s_mov_b32 {s(d)}, 0x{val & 0xffffffff:08x}\n s_mov_b32 {s(d+1)}, 0x{val >> 32:08x}")
    m64(M_HI0, 0x00FF00FF00FF00FF); m64(M_MMV, 0xFF00FF0000FF00FF); m64(M_H1S, 0x000000FF00FF00FF)
    import struct, math
    cval = struct.unpack("<I", struct.pack("<f", 128 ** -0.5 * math.log2(math.e)))[0]
    P(f"s_mov_b32 {s(S_C)}, 0x{cval:08x}")
    P(f"s_mov_b32 {s(S_STEP)}, 0")
    P(f"s_lshl_b32 s42, {s(S_HEAD)}, 19\n s_lshl_b32 s43, {s(S_W)}, 11\n s_add_u32 s42, s42, s43")
    P(f"s_add_u32 s44, s42, {K_OFF}")
    P(f"s_add_u32 {s(S_KN)}, s44, 8192")
    P(f"s_add_u32 {s(S_PFK)}, s44, 16384")
    P(f"s_add_u32 {s(S_VX)}, s42, {V_OFF}")
    P(f"s_add_u32 {s(S_PFV)}, {s(S_VX)}, 8192")
    P(f"s_lshl_b32 s42, {s(S_HEAD)}, 12\n s_lshl_b32 s43, {s(S_W)}, 10\n s_add_u32 s42, s42, s43\n s_add_u32 {s(S_KM)}, s42, {KM_OFF}")
    for i in range(4): P(f"s_mov_b32 {s(S_PL+i)}, {PART_OFF + 73728*i}")
    P(f"s_mul_i32 s42, {s(S_HEAD)}, 9216\n s_lshl_b32 s43, {s(S_W)}, 8\n s_add_u32 s42, s42, s43")
    for i in range(3): P(f"s_add_u32 {s(S_PS+i)}, s42, {PART_OFF + 4096*i}")
    P(f"s_mov_b32 {s(S_PDELTA)}, {PART_SLOT}")
    P(f"s_mov_b32 {s(S_RDB)}, {MR_OFF}\n s_mov_b32 {s(S_MWR)}, {MR_OFF + MR_SLOT}\n s_mov_b32 {s(S_MPO)}, {MR_OFF + 2*MR_SLOT}")
    P(f"s_lshl_b32 s42, {s(S_W)}, 10\n s_add_u32 {s(S_MRD)}, s42, {MR_OFF}\n s_add_u32 {s(S_MRD+1)}, s42, {MR_OFF + 4096}")
    P(f"s_mov_b32 {s(S_MRD+2)}, {MR_OFF + 8192}")
    P(f"s_lshl_b32 {s(S_FLAG)}, {s(S_HEAD)}, 2\n s_add_u32 {s(S_FLAG)}, {s(S_FLAG)}, {DBG_PROG}")
    P(f"s_mov_b32 m0, {JUNK}")
    P(f"buffer_load_dwordx4 {v(VA,4)}, {v(P1)}, {s(WS,4)}, s44 offen")
    P(f"buffer_load_dwordx4 {v(VA+4,4)}, {v(P1)}, {s(WS,4)}, s44 offen offset:1024")
    for i in range(0, 8, 2):
        P(f"v_mov_b64 {v(QA+i,2)}, 0")
        P(f"v_mov_b64 {v(KA+i,2)}, 0")
    emit_group_barrier(P, DBG, force_slow)
    P("s_memtime s[82:83]")
    P("s_cbranch_scc0 CH_slow")
    for tag in ("f", "s"):
        if tag == "s": P.label("CH_slow")
        for w in range(4):
            P(f"s_cmp_eq_u32 {s(S_W)}, {w}")
            P(f"s_cbranch_scc1 CH_go{tag}{w}")
        P("s_endpgm")
    for tag, st in (("f", ""), ("s", "sc1")):
        for w in range(4):
            P.label(f"CH_go{tag}{w}")
            emit_lb_prefetch(P, w)
            emit_loop(P, w, st, tag, DBG, nsteps)
    P.label("CH_END")
    P("s_waitcnt vmcnt(0) lgkmcnt(0)")
    P("s_barrier")
    P("s_memtime s[74:75]")
    P(f"s_cmp_lg_u32 {s(S_W)}, 0")
    P("s_cbranch_scc1 CH_X")
    P(f"v_mov_b32 v0, {s(S_STEP)}\n v_mov_b32 v1, 0")
    P("s_mov_b64 exec, 1")
    P(f"buffer_store_dword v0, v1, {s(DBG,4)}, {s(S_FLAG)} offen sc1")
    P("s_waitcnt lgkmcnt(0)")
    P(f"s_cmp_lg_u32 {s(S_HEAD)}, 0")
    P("s_cbranch_scc1 CH_X")
    P("s_sub_u32 s82, s82, s80\n s_sub_u32 s74, s74, s80")
    P(f"v_mov_b32 v2, s82\n v_mov_b32 v3, s74\n v_mov_b32 v4, {s(S_SPIN)}")
    P(f"buffer_store_dword v2, v1, {s(DBG,4)}, 0 offen offset:16")
    P(f"buffer_store_dword v3, v1, {s(DBG,4)}, 0 offen offset:20")
    P(f"buffer_store_dword v4, v1, {s(DBG,4)}, 0 offen offset:24")
    P.label("CH_X")
    P("s_endpgm")
```

```python
KA_X, KA_MEM0, KA_WQ, KA_WK, KA_WV, KA_WO, KA_SEG, KA_BX, KA_W1, KA_W2, KA_OUT, KA_DBG, KA_WS = [8 * i for i in range(13)]

S, DM, H, DH, M, SEG, NSEG, DFF = 2048, 576, 32, 128, 8, 32, 64, 4608

def _al(x, a=4096):
    return (x + a - 1) // a * a

WS_SIZE = 268435456
off = 0
XN_OFF = off;   off += _al(S * DM * 2)
Q_OFF = off;    off += H * NSEG * 8192
K_OFF = off;    off += H * NSEG * 8192
V_OFF = off;    off += H * NSEG * 8192
H_OFF = off;    off += S * DFF * 2
F2_NSPLIT = 6
F2_OFF = off;   off += F2_NSPLIT * S * DM * 4
KM_OFF = off;   off += NSEG * H * 4096
VM_OFF = off;   off += NSEG * H * 4096
PART_SLOT = H * DM * 16
PART_OFF = off; off += _al(2 * PART_SLOT)
MR_SLOT = 9216
MR_OFF = off;   off += _al(3 * MR_SLOT)
FLAG_OFF = off; off += 65536
DBGW_OFF = off; off += 1 << 22
TP_OFF = off;   off += NSEG * 8 * 73728
WS_USED = off
assert WS_USED < WS_SIZE
```

```python
from asmdsl import *
from layout import *

S_W = 3
WS = 8
BS = 12
XS = 16
OS = 20
P_WQ, P_WK, P_WV, P_W1, P_W2, P_WO = 24, 26, 28, 30, 32, 34
SC1 = "sc1"

def load_ptrs(P):
    P(f"s_load_dwordx2 {s(WS,2)}, s[0:1], {KA_WS}")
    P(f"s_load_dwordx2 {s(XS,2)}, s[0:1], {KA_X}")
    P(f"s_load_dwordx2 {s(OS,2)}, s[0:1], {KA_OUT}")
    for reg, ka in ((P_WQ, KA_WQ), (P_WK, KA_WK), (P_WV, KA_WV), (P_W1, KA_W1), (P_W2, KA_W2), (P_WO, KA_WO)):
        P(f"s_load_dwordx2 {s(reg,2)}, s[0:1], {ka}")
    P(f"s_mov_b32 {s(WS+2)}, {WS_SIZE}\n s_mov_b32 {s(WS+3)}, 0x00020000")
    P(f"s_mov_b32 {s(XS+2)}, {S*DM*2}\n s_mov_b32 {s(XS+3)}, 0x00020000")
    P(f"s_mov_b32 {s(OS+2)}, {S*DM*2}\n s_mov_b32 {s(OS+3)}, 0x00020000")
    P(f"s_mov_b32 {s(BS+3)}, 0x00020000")
    P(f"v_lshrrev_b32 v1, 6, v0\n v_readfirstlane_b32 {s(S_W)}, v1")
    P("s_waitcnt lgkmcnt(0)")

def xreduce(P, reg, tmp, op="add"):
    ins = "v_add_f32" if op == "add" else "v_max_f32"
    P(f"v_mov_b32 {v(tmp)}, {v(reg)}")
    P(f"v_permlane16_swap_b32 {v(reg)}, {v(tmp)}")
    P(f"{ins} {v(reg)}, {v(reg)}, {v(tmp)}")
    P(f"v_mov_b32 {v(tmp)}, {v(reg)}")
    P(f"v_permlane32_swap_b32 {v(reg)}, {v(tmp)}")
    P(f"{ins} {v(reg)}, {v(reg)}, {v(tmp)}")

def emit_ln(P, S_TT, tag="LN"):
    import struct
    inv = struct.unpack("<I", struct.pack("<f", 1.0 / 576))[0]
    eps = struct.unpack("<I", struct.pack("<f", 1e-5))[0]
    P("v_and_b32 v1, 63, v0\n v_and_b32 v2, 15, v1\n v_lshrrev_b32 v3, 4, v1")
    P(f"s_lshl_b32 s40, {s(S_TT)}, 4\n v_add_u32 v4, s40, v2\n v_mul_u32_u24 v4, 1152, v4")
    P(f"v_lshl_add_u32 v4, v3, 4, v4\n s_lshl_b32 s41, {s(S_W)}, 6\n v_add_u32 v4, s41, v4")
    P(f"v_lshlrev_b32 v5, 4, v1")
    P(f"v_lshlrev_b32 v6, 4, v2\n s_lshl_b32 s41, {s(S_W)}, 2\n v_add_u32 v7, s41, v6")
    P(f"s_mul_i32 s42, {s(S_TT)}, 18432\n s_lshl_b32 s41, {s(S_W)}, 10\n s_add_u32 s42, s42, s41\n s_add_u32 s42, s42, {XN_OFF}")
    P(f"s_cmp_ge_u32 {s(S_W)}, 2\n s_cbranch_scc1 {tag}_4")
    for n in (5, 4):
        if n == 4: P.label(f"{tag}_4")
        R = 8; F = 32
        for j in range(n):
            P(f"buffer_load_dwordx4 {v(R+4*j,4)}, v4, {s(XS,4)}, 0 offen offset:{256*j}")
        for j in range(n):
            P(f"s_waitcnt vmcnt({n-1-j})")
            for i in range(4):
                P(f"v_lshlrev_b32 {v(F+8*j+2*i)}, 16, {v(R+4*j+i)}")
                P(f"v_and_b32 {v(F+8*j+2*i+1)}, 0xffff0000, {v(R+4*j+i)}")
        N = 8 * n
        A0, A1, T = 72, 73, 74
        P(f"v_add_f32 {v(A0)}, {v(F)}, {v(F+1)}\n v_add_f32 {v(A1)}, {v(F+2)}, {v(F+3)}")
        for i in range(4, N, 2):
            P(f"v_add_f32 {v(A0)}, {v(A0)}, {v(F+i)}\n v_add_f32 {v(A1)}, {v(A1)}, {v(F+i+1)}")
        P(f"v_add_f32 {v(A0)}, {v(A0)}, {v(A1)}")
        xreduce(P, A0, T)
        P(f"ds_write_b32 v7, {v(A0)}\n s_waitcnt lgkmcnt(0)\n s_barrier")
        P(f"ds_read_b128 v[76:79], v6\n s_waitcnt lgkmcnt(0)")
        P(f"v_add_f32 v76, v76, v77\n v_add_f32 v78, v78, v79\n v_add_f32 v76, v76, v78\n v_mul_f32 v76, 0x{inv:08x}, v76")
        P(f"v_sub_f32 {v(T)}, {v(F)}, v76\n v_mul_f32 {v(A0)}, {v(T)}, {v(T)}\n v_sub_f32 {v(T+1)}, {v(F+1)}, v76\n v_mul_f32 {v(A1)}, {v(T+1)}, {v(T+1)}")
        for i in range(2, N, 2):
            P(f"v_sub_f32 {v(T)}, {v(F+i)}, v76\n v_sub_f32 {v(T+1)}, {v(F+i+1)}, v76")
            P(f"v_fmac_f32 {v(A0)}, {v(T)}, {v(T)}\n v_fmac_f32 {v(A1)}, {v(T+1)}, {v(T+1)}")
        P(f"v_add_f32 {v(A0)}, {v(A0)}, {v(A1)}")
        xreduce(P, A0, T)
        P(f"ds_write_b32 v7, {v(A0)} offset:256\n s_waitcnt lgkmcnt(0)\n s_barrier")
        P(f"ds_read_b128 v[80:83], v6 offset:256\n s_waitcnt lgkmcnt(0)")
        P(f"v_add_f32 v80, v80, v81\n v_add_f32 v82, v82, v83\n v_add_f32 v80, v80, v82\n v_mul_f32 v80, 0x{inv:08x}, v80")
        P("v_cvt_pk_bf16_f32 v77, v76, v80\n v_lshlrev_b32 v76, 16, v77\n v_and_b32 v80, 0xffff0000, v77")
        P(f"v_add_f32 v80, 0x{eps:08x}, v80\n v_cvt_pk_bf16_f32 v80, v80, v80\n v_and_b32 v80, 0xffff0000, v80")
        P("v_sqrt_f32 v80, v80\n v_cvt_pk_bf16_f32 v80, v80, v80\n v_and_b32 v80, 0xffff0000, v80\n v_rcp_f32 v80, v80")
        for j in range(n):
            for i in range(4):
                a_, b_ = F + 8*j + 2*i, F + 8*j + 2*i + 1
                P(f"v_sub_f32 {v(a_)}, {v(a_)}, v76\n v_sub_f32 {v(b_)}, {v(b_)}, v76")
                P(f"v_cvt_pk_bf16_f32 {v(a_)}, {v(a_)}, {v(b_)}")
                P(f"v_and_b32 {v(b_)}, 0xffff0000, {v(a_)}\n v_lshlrev_b32 {v(a_)}, 16, {v(a_)}")
                P(f"v_mul_f32 {v(a_)}, {v(a_)}, v80\n v_mul_f32 {v(b_)}, {v(b_)}, v80")
                P(f"v_cvt_pk_bf16_f32 {v(R+4*j+i)}, {v(a_)}, {v(b_)}")
            P(f"s_add_u32 s41, s42, {4096*j}")
            P(f"buffer_store_dwordx4 {v(R+4*j,4)}, v5, {s(WS,4)}, s41 offen {SC1}")
        P(f"s_branch {tag}_done")
    P.label(f"{tag}_done")

G_XF = (64, 128)
G_WF = (96, 160)
V_XA = 8
V_WA = 10
V_DA, V_DB = 18, 19
V_L16 = V_DA
S_AO = 40
S_BO = 44
S_LA, S_LB = 48, 49
S_BST = 50
S_CNT = 51
S_OUT = 52
S_T = 54

def gemm_lane_setup(P, ncol, pitch_reg):
    P("v_and_b32 v1, 63, v0\n v_lshrrev_b32 v2, 4, v1")
    P(f"v_lshlrev_b32 {v(V_DA)}, 4, v1")
    P(f"s_lshr_b32 {s(S_T)}, {s(S_W)}, 1\n s_lshl_b32 {s(S_T)}, {s(S_T)}, 13")
    P(f"v_add_u32 {v(V_XA)}, {s(S_T)}, {v(V_DA)}")
    P("v_bfe_u32 v3, v1, 2, 2\n v_and_b32 v4, 3, v1\n v_and_b32 v5, 1, v2\n v_lshl_add_u32 v5, v5, 2, v3")
    P("v_lshlrev_b32 v6, 12, v2\n v_lshl_add_u32 v6, v3, 9, v6\n v_lshl_add_u32 v6, v4, 3, v6\n v_add_u32 v6, 16384, v6")
    P(f"s_and_b32 {s(S_T)}, {s(S_W)}, 1\n s_mul_i32 {s(S_T)}, {s(S_T)}, {ncol}")
    for c in range(ncol):
        P(f"s_add_u32 {s(S_T+1)}, {s(S_T)}, {c}")
        P(f"v_xor_b32 v7, {s(S_T+1)}, v5\n v_lshl_add_u32 {v(V_WA+c)}, v7, 5, v6")
    P(f"s_and_b32 {s(S_T)}, {s(S_W)}, 1\n s_lshl_b32 {s(S_T)}, {s(S_T)}, 1\n s_lshr_b32 {s(S_T+1)}, {s(S_W)}, 1\n s_lshl_b32 {s(S_T+1)}, {s(S_T+1)}, 2\n s_or_b32 {s(S_T)}, {s(S_T)}, {s(S_T+1)}")
    P(f"v_lshrrev_b32 v3, 5, v1\n v_or_b32 v4, {s(S_T)}, v3\n v_lshlrev_b32 v4, 1, v4\n v_and_b32 v5, 31, v1\n v_xor_b32 v4, v4, v5")
    P(f"v_mul_lo_u32 v3, v3, {s(pitch_reg)}\n v_lshl_add_u32 {v(V_DB)}, v4, 4, v3")

def gemm_src_setup(P, a_base, a_stride, b_base, pitch_reg, perm):
    P(f"s_mul_i32 {s(S_T)}, {s(S_W)}, {4*a_stride}\n s_add_u32 {s(S_T)}, {s(S_T)}, {s(a_base)}")
    for i in range(4):
        P(f"s_add_u32 {s(S_AO+i)}, {s(S_T)}, {i*a_stride}")
    k2 = 4 if perm else 8
    k1 = 16 if perm else 4
    k3 = 8 if perm else 16
    P(f"s_and_b32 {s(S_T)}, {s(S_W)}, 1\n s_lshl_b32 {s(S_T)}, {s(S_T)}, 1\n s_lshr_b32 {s(S_T+1)}, {s(S_W)}, 1\n s_mul_i32 {s(S_T+1)}, {s(S_T+1)}, {k2}\n s_add_u32 {s(S_T)}, {s(S_T)}, {s(S_T+1)}")
    for i in range(4):
        P(f"s_add_u32 {s(S_T+1)}, {s(S_T)}, {(i&1)*k1 + (i>>1)*k3}\n s_mul_i32 {s(S_T+1)}, {s(S_T+1)}, {s(pitch_reg)}\n s_add_u32 {s(S_BO+i)}, {s(S_T+1)}, {s(b_base)}")
    P(f"s_lshl_b32 {s(S_BST)}, {s(pitch_reg)}, 5")
    P(f"s_lshl_b32 {s(S_LA)}, {s(S_W)}, 12")
    P(f"s_and_b32 {s(S_T)}, {s(S_W)}, 1\n s_lshl_b32 {s(S_T)}, {s(S_T)}, 10\n s_lshr_b32 {s(S_T+1)}, {s(S_W)}, 1\n s_lshl_b32 {s(S_T+1)}, {s(S_T+1)}, 12\n s_add_u32 {s(S_LB)}, {s(S_T)}, {s(S_T+1)}\n s_add_u32 {s(S_LB)}, {s(S_LB)}, 16384")

def dma_groups(ld):
    G = []
    for i in range(4):
        G.append([f"s_add_u32 m0, {s(S_LA)}, {i*1024}",
                  f"buffer_load_dwordx4 {v(V_DA)}, {s(WS,4)}, {s(S_AO+i)} offen {ld} lds",
                  f"s_add_u32 {s(S_AO+i)}, {s(S_AO+i)}, 1024"])
    for i in range(4):
        G.append([f"s_add_u32 m0, {s(S_LB)}, {(i&1)*2048 + (i>>1)*8192}",
                  f"buffer_load_dwordx4 {v(V_DB)}, {s(BS,4)}, {s(S_BO+i)} offen lds",
                  f"s_add_u32 {s(S_BO+i)}, {s(S_BO+i)}, {s(S_BST)}"])
    G[3] += [f"s_add_u32 {s(S_LA)}, {s(S_LA)}, 32768", f"s_and_b32 {s(S_LA)}, {s(S_LA)}, 0x1ffff"]
    G[7] += [f"s_add_u32 {s(S_LB)}, {s(S_LB)}, 32768", f"s_and_b32 {s(S_LB)}, {s(S_LB)}, 0x1ffff"]
    return G

def frag_reads(ncol, st, par):
    R = []
    o = par * 32768
    for c in range(max(8, ncol)):
        if c < ncol:
            for h in range(2):
                R.append(f"ds_read_b64_tr_b16 {v(G_WF[st]+4*c+2*h,2)}, {v(V_WA+c)} offset:{o + h*2048}")
        if c < 8:
            R.append(f"ds_read_b128 {v(G_XF[st]+4*c,4)}, {v(V_XA)} offset:{o + c*1024}")
    return R

def toggles(ncol):
    return [f"v_xor_b32 {v(V_XA)}, 0x10000, {v(V_XA)}"] + [f"v_xor_b32 {v(V_WA+c)}, 0x10000, {v(V_WA+c)}" for c in range(ncol)]

def acc(dt, tt): return (dt * 8 + tt) * 4

def gemm_iter(P, ncol, vmode, st, reads, dmas, wait):
    P(wait); P("s_barrier")
    M = []
    for dt in range(ncol):
        for tt in range(8):
            wf, xf = v(G_WF[st] + 4*dt, 4), v(G_XF[st] + 4*tt, 4)
            A_, B_ = (xf, wf) if vmode else (wf, xf)
            M.append(f"v_mfma_f32_16x16x32_bf16 {a(acc(dt,tt),4)}, {A_}, {B_}, {a(acc(dt,tt),4)}")
    slots = [[] for _ in M]
    nr = len(reads)
    for i, rd in enumerate(reads): slots[min(i, len(M) - 1)].append(rd)
    if dmas:
        first = 2
        step = max(1, (len(M) - 8) // len(dmas))
        for i, g in enumerate(dmas): slots[min(first + i * step, len(M) - 1)] += g
    for m, f in zip(M, slots):
        P(m)
        for x in f: P(x)

def emit_gemm_main(P, ncol, vmode, nk, tag, ld=SC1):
    G = dma_groups(ld)
    for st in range(4):
        for g in G:
            for x in g: P(x)
    for i in range(ncol * 32):
        P(f"v_accvgpr_write_b32 {a(i)}, 0")
    P("s_waitcnt vmcnt(24)\n s_barrier")
    for rd in frag_reads(ncol, 0, 0): P(rd)
    P(f"s_mov_b32 {s(S_CNT)}, {(nk - 4)//2}")
    P.label(f"{tag}_loop")
    gemm_iter(P, ncol, vmode, 0, frag_reads(ncol, 1, 1), G, "s_waitcnt vmcnt(16) lgkmcnt(0)")
    for t in toggles(ncol): P(t)
    gemm_iter(P, ncol, vmode, 1, frag_reads(ncol, 0, 0), G, "s_waitcnt vmcnt(16) lgkmcnt(0)")
    P(f"s_sub_u32 {s(S_CNT)}, {s(S_CNT)}, 1\n s_cmp_lg_u32 {s(S_CNT)}, 0\n s_cbranch_scc1 {tag}_loop")
    gemm_iter(P, ncol, vmode, 0, frag_reads(ncol, 1, 1), None, "s_waitcnt vmcnt(16) lgkmcnt(0)")
    for t in toggles(ncol): P(t)
    gemm_iter(P, ncol, vmode, 1, frag_reads(ncol, 0, 0), None, "s_waitcnt vmcnt(8) lgkmcnt(0)")
    gemm_iter(P, ncol, vmode, 0, frag_reads(ncol, 1, 1), None, "s_waitcnt vmcnt(0) lgkmcnt(0)")
    gemm_iter(P, ncol, vmode, 1, [], None, "s_waitcnt lgkmcnt(0)")
    if ((nk // 2 - 1) & 1):
        for t in toggles(ncol): P(t)

def cvt_quad(P, dst, a0):
    for i in range(4): P(f"v_accvgpr_read_b32 {v(dst+8+i)}, {a(a0+i)}")
    P(f"v_cvt_pk_bf16_f32 {v(dst)}, {v(dst+8)}, {v(dst+9)}")
    P(f"v_cvt_pk_bf16_f32 {v(dst+1)}, {v(dst+10)}, {v(dst+11)}")

def emit_epi_kq(P, kind):
    n = 0
    for tt in range(8):
        for w4 in range(4):
            T = 64 + 16 * (n & 3); n += 1
            lo, hi = (T, T + 2)
            if kind == "k" and (tt & 1): lo, hi = hi, lo
            qa = [acc(2*w4, tt), acc(2*w4+1, tt)]
            for dst, a0 in ((lo, qa[0]), (hi, qa[1])):
                for i in range(4): P(f"v_accvgpr_read_b32 {v(T+4+i)}, {a(a0+i)}")
                P(f"v_cvt_pk_bf16_f32 {v(dst)}, {v(T+4)}, {v(T+5)}")
                P(f"v_cvt_pk_bf16_f32 {v(dst+1)}, {v(T+6)}, {v(T+7)}")
            if kind == "h":
                for i in range(4): P(f"v_pk_max_i16 {v(T+i)}, {v(T+i)}, 0")
                off = tt * 147456 + w4 * 1024
            else:
                off = (tt >> 1) * 8192 + w4 * 2048 + (tt & 1) * 1024
            P(f"s_add_u32 {s(S_T)}, {s(S_OUT)}, {off}")
            P(f"buffer_store_dwordx4 {v(T,4)}, {v(V_L16)}, {s(WS,4)}, {s(S_T)} offen {SC1}")

def emit_epi_v(P):
    n = 0
    for j in range(4):
        for w4 in range(4):
            for uw in range(2):
                T = 64 + 16 * (n & 3); n += 1
                qa = [acc(2*w4 + uw, 2*j), acc(2*w4 + 1 - uw, 2*j + 1)]
                for dst, a0 in ((T, qa[0]), (T + 2, qa[1])):
                    for i in range(4): P(f"v_accvgpr_read_b32 {v(T+4+i)}, {a(a0+i)}")
                    P(f"v_cvt_pk_bf16_f32 {v(dst)}, {v(T+4)}, {v(T+5)}")
                    P(f"v_cvt_pk_bf16_f32 {v(dst+1)}, {v(T+6)}, {v(T+7)}")
                P(f"s_add_u32 {s(S_T)}, {s(S_OUT)}, {j*8192 + w4*2048 + uw*1024}")
                P(f"buffer_store_dwordx4 {v(T,4)}, {v(V_L16)}, {s(WS,4)}, {s(S_T)} offen {SC1}")

def emit_epi_f2(P):
    for tt in range(8):
        for ct in range(6):
            P(f"s_add_u32 {s(S_T)}, {s(S_OUT)}, {tt*36864 + ct*1024}")
            P(f"buffer_store_dwordx4 {a(acc(ct,tt),4)}, {v(V_L16)}, {s(WS,4)}, {s(S_T)} offen {SC1}")

S_RB, S_CB, S_KS, S_PITCH, S_ABASE, S_BBASE = 60, 61, 62, 63, 64, 65

def emit_tile(P, kind, tag):
    ptr, pitch, nrec = {"k": (P_WK, 8192, 576*8192), "v": (P_WV, 8192, 576*8192), "q": (P_WQ, 8192, 576*8192),
                        "h": (P_W1, 9216, 576*9216), "f": (P_W2, 1152, 4608*1152)}[kind]
    P(f"s_mov_b64 {s(BS,2)}, {s(ptr,2)}\n s_mov_b32 {s(BS+2)}, {nrec}\n s_mov_b32 {s(S_PITCH)}, {pitch}")
    ncol = 6 if kind == "f" else 8
    gemm_lane_setup(P, ncol, S_PITCH)
    if kind == "f":
        P(f"s_mul_i32 {s(S_ABASE)}, {s(S_RB)}, {16*147456}\n s_mul_i32 {s(S_T)}, {s(S_KS)}, {24*1024}\n s_add_u32 {s(S_ABASE)}, {s(S_ABASE)}, {s(S_T)}\n s_add_u32 {s(S_ABASE)}, {s(S_ABASE)}, {H_OFF}")
        P(f"s_mul_i32 {s(S_BBASE)}, {s(S_KS)}, {768*1152}\n s_mul_i32 {s(S_T)}, {s(S_CB)}, 384\n s_add_u32 {s(S_BBASE)}, {s(S_BBASE)}, {s(S_T)}")
        gemm_src_setup(P, S_ABASE, 147456, S_BBASE, S_PITCH, True)
        emit_gemm_main(P, 6, False, 24, tag)
        P(f"s_mul_i32 {s(S_OUT)}, {s(S_KS)}, {S*DM*4}\n s_lshl_b32 {s(S_T)}, {s(S_RB)}, 1\n s_lshr_b32 {s(S_T+1)}, {s(S_W)}, 1\n s_add_u32 {s(S_T)}, {s(S_T)}, {s(S_T+1)}\n s_mul_i32 {s(S_T)}, {s(S_T)}, {8*36864}\n s_add_u32 {s(S_OUT)}, {s(S_OUT)}, {s(S_T)}")
        P(f"s_lshl_b32 {s(S_T)}, {s(S_CB)}, 1\n s_and_b32 {s(S_T+1)}, {s(S_W)}, 1\n s_add_u32 {s(S_T)}, {s(S_T)}, {s(S_T+1)}\n s_mul_i32 {s(S_T)}, {s(S_T)}, 6144\n s_add_u32 {s(S_OUT)}, {s(S_OUT)}, {s(S_T)}\n s_add_u32 {s(S_OUT)}, {s(S_OUT)}, {F2_OFF}")
        emit_epi_f2(P)
        return
    P(f"s_mul_i32 {s(S_ABASE)}, {s(S_RB)}, {16*18432}\n s_add_u32 {s(S_ABASE)}, {s(S_ABASE)}, {XN_OFF}")
    P(f"s_lshl_b32 {s(S_BBASE)}, {s(S_CB)}, 9")
    gemm_src_setup(P, S_ABASE, 18432, S_BBASE, S_PITCH, False)
    emit_gemm_main(P, 8, kind == "v", 18, tag)
    if kind == "h":
        P(f"s_lshl_b32 {s(S_T)}, {s(S_RB)}, 1\n s_lshr_b32 {s(S_T+1)}, {s(S_W)}, 1\n s_add_u32 {s(S_T)}, {s(S_T)}, {s(S_T+1)}\n s_mul_i32 {s(S_OUT)}, {s(S_T)}, {8*147456}")
        P(f"s_lshl_b32 {s(S_T)}, {s(S_CB)}, 1\n s_and_b32 {s(S_T+1)}, {s(S_W)}, 1\n s_add_u32 {s(S_T)}, {s(S_T)}, {s(S_T+1)}\n s_lshl_b32 {s(S_T)}, {s(S_T)}, 12\n s_add_u32 {s(S_OUT)}, {s(S_OUT)}, {s(S_T)}\n s_add_u32 {s(S_OUT)}, {s(S_OUT)}, {H_OFF}")
        emit_epi_kq(P, "h")
    else:
        base = {"k": K_OFF, "v": V_OFF, "q": Q_OFF}[kind]
        P(f"s_lshl_b32 {s(S_T)}, {s(S_CB)}, 1\n s_and_b32 {s(S_T+1)}, {s(S_W)}, 1\n s_add_u32 {s(S_T)}, {s(S_T)}, {s(S_T+1)}\n s_lshl_b32 {s(S_OUT)}, {s(S_T)}, 19")
        P(f"s_lshl_b32 {s(S_T)}, {s(S_RB)}, 1\n s_lshr_b32 {s(S_T+1)}, {s(S_W)}, 1\n s_add_u32 {s(S_T)}, {s(S_T)}, {s(S_T+1)}\n s_lshl_b32 {s(S_T)}, {s(S_T)}, 15\n s_add_u32 {s(S_OUT)}, {s(S_OUT)}, {s(S_T)}\n s_add_u32 {s(S_OUT)}, {s(S_OUT)}, {base}")
        if kind == "v": emit_epi_v(P)
        else: emit_epi_kq(P, kind)

T_WO = 0
TQ, TK, TV = 16, 48, 80
TKM, TVM = 112, 128
TSX = 144
TSM = 156
TP_ = 164
TO = 16
TOB = 176
TACC = 16
V_TL16, V_TKM, V_TVA, V_TVB = 8, 9, 10, 11
S_SEG, S_HG, S_CQ = 60, 61, 62
M_DIAG = 64
M_GLO = 72
S_TC = 74
S_TB = 75

def emit_tail_setup(P, kmf):
    import struct, math
    P("v_and_b32 v1, 63, v0\n v_lshrrev_b32 v2, 4, v1\n v_and_b32 v3, 15, v1")
    P(f"v_lshlrev_b32 {v(V_TL16)}, 4, v1")
    P(f"v_and_b32 v4, 7, v3\n v_lshl_add_u32 v4, v2, 4, v4\n v_lshlrev_b32 {v(V_TKM)}, 4, v4")
    P("v_and_b32 v4, 1, v2")
    if kmf == "old":
        P(f"v_lshl_add_u32 v5, v4, 4, v3\n v_lshlrev_b32 v5, 4, v5\n v_add_u32 {v(V_TVA)}, 8, v5\n v_add_u32 {v(V_TVB)}, 520, v5")
    else:
        P(f"v_lshl_add_u32 v5, v4, 5, v3\n v_lshlrev_b32 v5, 4, v5\n v_add_u32 {v(V_TVA)}, 8, v5\n v_add_u32 {v(V_TVB)}, 264, v5")
    for i in range(4):
        P(f"v_lshl_add_u32 v4, v2, 2, {i}\n v_cmp_le_u32 {s(M_DIAG+2*i,2)}, v4, v3")
    P(f"v_cmp_gt_u32 {s(M_GLO,2)}, 2, v2")
    cval = struct.unpack("<I", struct.pack("<f", 128 ** -0.5 * math.log2(math.e)))[0]
    P(f"s_mov_b32 {s(S_TC)}, 0x{cval:08x}")
    P(f"s_mov_b64 {s(BS,2)}, {s(P_WO,2)}\n s_mov_b32 {s(BS+2)}, {32*147456}")
    P("v_lshrrev_b32 v4, 5, v1\n v_and_b32 v5, 31, v1\n v_mul_u32_u24 v6, 1152, v4")
    for jj in range(4):
        f = ((jj & 1) << 1) | ((jj >> 1) << 2)
        P(f"v_or_b32 v7, {f}, v4\n v_lshlrev_b32 v7, 1, v7\n v_xor_b32 v7, v7, v5\n v_lshl_add_u32 {v(12+jj)}, v7, 4, v6")
    P("v_bfe_u32 v4, v1, 2, 2\n v_and_b32 v5, 3, v1\n v_and_b32 v6, 1, v2\n v_lshl_add_u32 v6, v6, 2, v4")
    P(f"v_lshlrev_b32 v7, 12, v2\n v_lshl_add_u32 v7, v4, 9, v7\n v_lshl_add_u32 v7, v5, 3, v7\n s_lshl_b32 {s(S_TB)}, {s(S_W)}, 15\n v_add_u32 v7, {s(S_TB)}, v7")
    for c in range(9):
        P(f"v_xor_b32 v4, {c}, v6\n v_lshl_add_u32 {v(20+c)}, v4, 5, v7")
    P(f"s_lshl_b32 {s(S_TB+1)}, {s(S_HG)}, 2\n s_add_u32 {s(S_TB+1)}, {s(S_TB+1)}, {s(S_W)}\n s_mul_i32 {s(S_TB+1)}, {s(S_TB+1)}, 147456\n s_mul_i32 {s(S_TB+2)}, {s(S_CQ)}, 288\n s_add_u32 {s(S_TB+1)}, {s(S_TB+1)}, {s(S_TB+2)}")
    def dma(ks):
        for j in range(16):
            j0, j1, j2, j3 = j & 1, (j >> 1) & 1, (j >> 2) & 1, j >> 3
            k = 2*j0 + 4*j2 + 8*j3 + 16*j1
            P(f"s_add_u32 m0, {s(S_TB)}, {(ks&1)*16384 + j*1024}\n s_add_u32 {s(S_TB+2)}, {s(S_TB+1)}, {(32*ks + k)*1152}")
            P(f"buffer_load_dwordx4 {v(12 + j0 + 2*j2)}, {s(BS,4)}, {s(S_TB+2)} offen lds")
    dma(0); dma(1)
    for ks in range(4):
        P(f"s_waitcnt vmcnt({16 if ks < 3 else 0})")
        for c in range(9):
            for h in range(2):
                P(f"ds_read_b64_tr_b16 {a(T_WO + (c*4+ks)*4 + 2*h, 2)}, {v(20+c)} offset:{(ks&1)*16384 + h*2048}")
        P("s_waitcnt lgkmcnt(0)")
        if ks + 2 < 4: dma(ks + 2)

def emit_tail_loads(P):
    P(f"s_lshl_b32 {s(S_TB)}, {s(S_HG)}, 2\n s_add_u32 {s(S_TB)}, {s(S_TB)}, {s(S_W)}\n s_lshl_b32 {s(S_TB)}, {s(S_TB)}, 19\n s_lshl_b32 {s(S_TB+1)}, {s(S_SEG)}, 13\n s_add_u32 {s(S_TB)}, {s(S_TB)}, {s(S_TB+1)}")
    P(f"s_add_u32 {s(S_TB+1)}, {s(S_TB)}, {Q_OFF}\n s_add_u32 {s(S_TB+2)}, {s(S_TB)}, {K_OFF}\n s_add_u32 {s(S_TB+3)}, {s(S_TB)}, {V_OFF}")
    for half in range(2):
        if half:
            for i in (1, 2, 3): P(f"s_add_u32 {s(S_TB+i)}, {s(S_TB+i)}, 4096")
        for w2 in range(2):
            w4 = 2*half + w2
            for t in range(2):
                o = w2*2048 + t*1024
                P(f"buffer_load_dwordx4 {v(TQ + (w4*2+t)*4, 4)}, {v(V_TL16)}, {s(WS,4)}, {s(S_TB+1)} offen offset:{o} {SC1}")
                if t == 0:
                    P(f"buffer_load_dwordx4 {v(TK + (w4*2)*4, 4)}, {v(V_TL16)}, {s(WS,4)}, {s(S_TB+2)} offen offset:{o} {SC1}")
                else:
                    P(f"buffer_load_dwordx2 {v(TK + (w4*2+1)*4 + 2, 2)}, {v(V_TL16)}, {s(WS,4)}, {s(S_TB+2)} offen offset:{o} {SC1}")
                    P(f"buffer_load_dwordx2 {v(TK + (w4*2+1)*4, 2)}, {v(V_TL16)}, {s(WS,4)}, {s(S_TB+2)} offen offset:{o+8} {SC1}")
                P(f"buffer_load_dwordx2 {v(TV + (2*w4+t)*4, 2)}, {v(V_TL16)}, {s(WS,4)}, {s(S_TB+3)} offen offset:{o} {SC1}")
                P(f"buffer_load_dwordx2 {v(TV + (2*w4+1-t)*4 + 2, 2)}, {v(V_TL16)}, {s(WS,4)}, {s(S_TB+3)} offen offset:{o+8} {SC1}")

def emit_tail_sx(P):
    P("s_waitcnt vmcnt(0)")
    for n, (kt, qt) in enumerate(((0, 0), (0, 1), (1, 1))):
        for w4 in range(4):
            c = "0" if w4 == 0 else v(TSX + 4*n, 4)
            P(f"v_mfma_f32_16x16x32_bf16 {v(TSX+4*n,4)}, {v(TK+(w4*2+kt)*4,4)}, {v(TQ+(w4*2+qt)*4,4)}, {c}")

def emit_tail_km_loads(P):
    P(f"s_lshl_b32 {s(S_TB)}, {s(S_SEG)}, 17\n s_lshl_b32 {s(S_TB+1)}, {s(S_HG)}, 14\n s_add_u32 {s(S_TB)}, {s(S_TB)}, {s(S_TB+1)}\n s_lshl_b32 {s(S_TB+1)}, {s(S_W)}, 12\n s_add_u32 {s(S_TB)}, {s(S_TB)}, {s(S_TB+1)}\n s_add_u32 {s(S_TB)}, {s(S_TB)}, {KM_OFF}")
    X = 180
    for w4 in range(4):
        P(f"buffer_load_dwordx2 {v(TKM+4*w4,2)}, {v(V_TKM)}, {s(WS,4)}, {s(S_TB)} offen offset:{w4*1024} {SC1}")
        P(f"buffer_load_dwordx2 {v(TKM+4*w4+2,2)}, {v(V_TKM)}, {s(WS,4)}, {s(S_TB)} offen offset:{w4*1024+128} {SC1}")
    for w4 in range(4):
        P(f"buffer_load_dwordx2 {v(X+4*w4,2)}, {v(V_TVA)}, {s(WS,4)}, {s(S_TB)} offen offset:{w4*1024} {SC1}")
        P(f"buffer_load_dwordx2 {v(X+4*w4+2,2)}, {v(V_TVB)}, {s(WS,4)}, {s(S_TB)} offen offset:{w4*1024} {SC1}")
    return X

def emit_tail_rest(P, X):
    NEG = 0xf149f2ca
    P("s_waitcnt vmcnt(8)")
    for qt in range(2):
        for w4 in range(4):
            c = "0" if w4 == 0 else v(TSM + 4*qt, 4)
            P(f"v_mfma_f32_16x16x32_bf16 {v(TSM+4*qt,4)}, {v(TKM+4*w4,4)}, {v(TQ+(w4*2+qt)*4,4)}, {c}")
    P("s_waitcnt vmcnt(0)")
    P(f"v_mov_b32 v4, 0xffff")
    for w4 in range(4):
        a2, a3, b2, b3 = X+4*w4, X+4*w4+1, X+4*w4+2, X+4*w4+3
        P(f"v_bfi_b32 {v(TVM+4*w4)}, v4, {v(a2)}, {v(a3)}\n v_bfi_b32 {v(TVM+4*w4+1)}, v4, {v(b2)}, {v(b3)}")
        P(f"v_bfi_b32 {v(TVM+4*w4+2)}, v4, {v(a3)}, {v(a2)}\n v_bfi_b32 {v(TVM+4*w4+3)}, v4, {v(b3)}, {v(b2)}")
    P(f"v_mov_b32 v5, 0x{NEG:08x}")
    for i in range(4):
        P(f"v_cndmask_b32 {v(TSX+i)}, v5, {v(TSX+i)}, {s(M_DIAG+2*i,2)}")
        P(f"v_cndmask_b32 {v(TSX+8+i)}, v5, {v(TSX+8+i)}, {s(M_DIAG+2*i,2)}")
    for qt in range(2):
        for i in range(4):
            P(f"v_cndmask_b32 {v(TSM+4*qt+i)}, v5, {v(TSM+4*qt+i)}, {s(M_GLO,2)}")
    for qt in range(2):
        vals = [TSM+4*qt+i for i in range(4)] + ([TSX+i for i in range(4)] if qt == 0 else [TSX+4+i for i in range(8)])
        M, T = 6, 7
        P(f"v_max3_f32 {v(M)}, {v(vals[0])}, {v(vals[1])}, {v(vals[2])}")
        rest = vals[3:]
        while rest:
            if len(rest) >= 2:
                P(f"v_max3_f32 {v(M)}, {v(M)}, {v(rest[0])}, {v(rest[1])}"); rest = rest[2:]
            else:
                P(f"v_max_f32 {v(M)}, {v(M)}, {v(rest[0])}"); rest = []
        xreduce(P, M, T, "max")
        P(f"v_mul_f32 {v(M)}, {s(S_TC)}, {v(M)}")
        for r_ in vals: P(f"v_fma_f32 {v(r_)}, {v(r_)}, {s(S_TC)}, -{v(M)}")
        for r_ in vals: P(f"v_exp_f32 {v(r_)}, {v(r_)}")
        P(f"v_add_f32 {v(M)}, {v(vals[0])}, {v(vals[1])}")
        for r_ in vals[2:]: P(f"v_add_f32 {v(M)}, {v(M)}, {v(r_)}")
        xreduce(P, M, T, "add")
        P(f"v_rcp_f32 {v(M)}, {v(M)}")
        for r_ in vals: P(f"v_mul_f32 {v(r_)}, {v(r_)}, {v(M)}")
        px = TP_ + 4*qt; pm = TP_ + 8 + 2*qt
        P(f"v_cvt_pk_bf16_f32 {v(pm)}, {v(vals[0])}, {v(vals[1])}\n v_cvt_pk_bf16_f32 {v(pm+1)}, {v(vals[2])}, {v(vals[3])}")
        P(f"v_cvt_pk_bf16_f32 {v(px)}, {v(vals[4])}, {v(vals[5])}\n v_cvt_pk_bf16_f32 {v(px+1)}, {v(vals[6])}, {v(vals[7])}")
        if qt == 0:
            P(f"v_mov_b32 {v(px+2)}, 0\n v_mov_b32 {v(px+3)}, 0")
        else:
            P(f"v_cvt_pk_bf16_f32 {v(px+2)}, {v(vals[8])}, {v(vals[9])}\n v_cvt_pk_bf16_f32 {v(px+3)}, {v(vals[10])}, {v(vals[11])}")
    for qt in range(2):
        for dt in range(8):
            d = TO + (dt*2 + qt)*4
            P(f"v_mfma_f32_16x16x32_bf16 {v(d,4)}, {v(TV+4*dt,4)}, {v(TP_+4*qt,4)}, 0")
    for qt in range(2):
        for dt in range(8):
            d = TO + (dt*2 + qt)*4
            P(f"v_mfma_f32_16x16x16_bf16 {v(d,4)}, {v(TVM+2*dt,2)}, {v(TP_+8+2*qt,2)}, {v(d,4)}")
    for qt in range(2):
        for dt in range(8):
            d = TO + (dt*2 + qt)*4
            o = TOB + ((dt >> 1)*2 + qt)*4 + 2*(dt & 1)
            P(f"v_cvt_pk_bf16_f32 {v(o)}, {v(d)}, {v(d+1)}\n v_cvt_pk_bf16_f32 {v(o+1)}, {v(d+2)}, {v(d+3)}")
    for qt in range(2):
        for ks in range(4):
            for ct in range(9):
                d = TACC + (qt*9 + ct)*4
                c = "0" if ks == 0 else v(d, 4)
                P(f"v_mfma_f32_16x16x32_bf16 {v(d,4)}, {a(T_WO+(ct*4+ks)*4,4)}, {v(TOB+(ks*2+qt)*4,4)}, {c}")
    P(f"s_mul_i32 {s(S_TB)}, {s(S_W)}, 18432\n v_add_u32 v4, {s(S_TB)}, {v(V_TL16)}")
    P("s_barrier")
    for u in range(18):
        P(f"ds_write_b128 v4, {v(TACC+4*u,4)} offset:{u*1024}")
    P("s_waitcnt lgkmcnt(0)\n s_barrier")
    P(f"s_lshl_b32 {s(S_TB)}, {s(S_W)}, 10\n v_add_u32 v4, {s(S_TB)}, {v(V_TL16)}\n v_add_u32 v5, 36864, v4")
    P(f"s_lshl_b32 {s(S_TB)}, {s(S_SEG)}, 3\n s_add_u32 {s(S_TB)}, {s(S_TB)}, {s(S_HG)}\n s_mul_i32 {s(S_TB)}, {s(S_TB)}, 73728\n s_mul_i32 {s(S_TB+1)}, {s(S_CQ)}, 9216\n s_add_u32 {s(S_TB)}, {s(S_TB)}, {s(S_TB+1)}\n s_add_u32 {s(S_TB)}, {s(S_TB)}, {TP_OFF}")
    lab = P.newlabel("TL_R")
    for r_ in range(5):
        if r_ == 4:
            P(f"s_cmp_ge_u32 {s(S_W)}, 2\n s_cbranch_scc1 {lab}")
        R = 96 + 16*(r_ & 1)
        o = r_*4096
        P(f"ds_read_b128 {v(R,4)}, v4 offset:{o}\n ds_read_b128 {v(R+4,4)}, v4 offset:{o+18432}")
        P(f"ds_read_b128 {v(R+8,4)}, v5 offset:{o}\n ds_read_b128 {v(R+12,4)}, v5 offset:{o+18432}")
        P(f"s_add_u32 {s(S_TB+1)}, {s(S_W)}, {4*r_}\n s_cmp_ge_u32 {s(S_TB+1)}, 9\n s_cselect_b32 {s(S_TB+2)}, 27648, 0\n s_lshl_b32 {s(S_TB+1)}, {s(S_TB+1)}, 10\n s_add_u32 {s(S_TB+1)}, {s(S_TB+1)}, {s(S_TB+2)}\n s_add_u32 {s(S_TB+1)}, {s(S_TB+1)}, {s(S_TB)}")
        P("s_waitcnt lgkmcnt(0)")
        for i in range(4):
            P(f"v_add_f32 {v(R+i)}, {v(R+i)}, {v(R+4+i)}\n v_add_f32 {v(R+8+i)}, {v(R+8+i)}, {v(R+12+i)}")
        for i in range(4):
            P(f"v_add_f32 {v(R+i)}, {v(R+i)}, {v(R+8+i)}")
        P(f"buffer_store_dwordx4 {v(R,4)}, {v(V_TL16)}, {s(WS,4)}, {s(S_TB+1)} offen {SC1}")
    P.label(lab)

S_U = 63
def emit_final(P):
    P("v_and_b32 v1, 63, v0\n v_lshrrev_b32 v2, 4, v1\n v_and_b32 v3, 15, v1\n v_lshlrev_b32 v4, 4, v1")
    P(f"s_mul_i32 {s(S_TB)}, {s(S_SEG)}, {8*73728}\n s_lshl_b32 {s(S_TB+1)}, {s(S_U)}, 10\n s_add_u32 {s(S_TB)}, {s(S_TB)}, {s(S_TB+1)}\n s_add_u32 {s(S_TB)}, {s(S_TB)}, {TP_OFF}")
    for hg in range(8):
        P(f"buffer_load_dwordx4 {v(16+4*hg,4)}, v4, {s(WS,4)}, {s(S_TB)} offen {SC1}")
        if hg < 7: P(f"s_add_u32 {s(S_TB)}, {s(S_TB)}, 73728")
    P(f"s_mul_i32 {s(S_TB)}, {s(S_SEG)}, 73728\n s_add_u32 {s(S_TB)}, {s(S_TB)}, {s(S_TB+1)}\n s_add_u32 {s(S_TB)}, {s(S_TB)}, {F2_OFF}")
    for ks in range(6):
        P(f"buffer_load_dwordx4 {v(48+4*ks,4)}, v4, {s(WS,4)}, {s(S_TB)} offen {SC1}")
        if ks < 5: P(f"s_add_u32 {s(S_TB)}, {s(S_TB)}, {S*DM*4}")
    P(f"s_cmp_ge_u32 {s(S_U)}, 36\n s_cselect_b32 {s(S_TB+1)}, 16, 0\n s_cselect_b32 {s(S_TB+2)}, 36, 0\n s_sub_u32 {s(S_TB+2)}, {s(S_U)}, {s(S_TB+2)}")
    P(f"s_lshl_b32 {s(S_TB)}, {s(S_SEG)}, 5\n s_add_u32 {s(S_TB)}, {s(S_TB)}, {s(S_TB+1)}\n s_mul_i32 {s(S_TB)}, {s(S_TB)}, 1152\n s_lshl_b32 {s(S_TB+2)}, {s(S_TB+2)}, 5\n s_add_u32 {s(S_TB)}, {s(S_TB)}, {s(S_TB+2)}")
    P(f"v_mul_u32_u24 v5, 1152, v3\n v_lshl_add_u32 v5, v2, 3, v5")
    P(f"buffer_load_dwordx2 v[6:7], v5, {s(XS,4)}, {s(S_TB)} offen")
    P("s_waitcnt vmcnt(7)")
    for hg in range(1, 8):
        pass
    def tree(base, n):
        regs = [base + 4*i for i in range(n)]
        while len(regs) > 1:
            nxt = []
            for k in range(0, len(regs) - 1, 2):
                for i in range(4): P(f"v_add_f32 {v(regs[k]+i)}, {v(regs[k]+i)}, {v(regs[k+1]+i)}")
                nxt.append(regs[k])
            if len(regs) & 1: nxt.append(regs[-1])
            regs = nxt
    tree(16, 8)
    P("s_waitcnt vmcnt(0)")
    tree(48, 6)
    P("v_cvt_pk_bf16_f32 v16, v16, v17\n v_cvt_pk_bf16_f32 v17, v18, v19")
    P("v_cvt_pk_bf16_f32 v48, v48, v49\n v_cvt_pk_bf16_f32 v49, v50, v51")
    for j in range(2):
        P(f"v_lshlrev_b32 v8, 16, v{6+j}\n v_and_b32 v9, 0xffff0000, v{6+j}")
        P(f"v_lshlrev_b32 v10, 16, v{16+j}\n v_and_b32 v11, 0xffff0000, v{16+j}")
        P("v_add_f32 v8, v8, v10\n v_add_f32 v9, v9, v11\n v_cvt_pk_bf16_f32 v8, v8, v9")
        P("v_and_b32 v9, 0xffff0000, v8\n v_lshlrev_b32 v8, 16, v8")
        P(f"v_lshlrev_b32 v10, 16, v{48+j}\n v_and_b32 v11, 0xffff0000, v{48+j}")
        P(f"v_add_f32 v8, v8, v10\n v_add_f32 v9, v9, v11\n v_cvt_pk_bf16_f32 v{12+j}, v8, v9")
    P(f"buffer_store_dwordx2 v[12:13], v5, {s(OS,4)}, {s(S_TB)} offen")
```

```python
from asmdsl import Ins, need

LAT_DS = 110
LAT_DSW = 90
LAT_VM = 400
LAT_BAR = 30

class Node:
    __slots__ = ("ins", "reads", "writes", "succ", "pred", "prio", "idx", "wait_done", "t", "cost", "is_mfma", "npred",
                 "ready", "bias", "name", "after", "minready", "ext_only")
    def __init__(self, texts, rd=(), wr=(), wait_done=(), bias=0, name=None):
        if isinstance(texts, str):
            texts = [x.strip() for x in texts.split("\n") if x.strip()]
        self.ins = [Ins(t) for t in texts]
        self.reads = set(); self.writes = set()
        for i in self.ins:
            if i.kind in ("label", "dir"): continue
            self.reads |= (i.reads - self.writes)
            self.writes |= i.writes
        for t in rd: self.reads.add(("tag", t))
        for t in wr: self.writes.add(("tag", t))
        self.wait_done = list(wait_done)
        self.succ = []; self.pred = []
        self.bias = bias
        self.name = name
        self.is_mfma = any(i.kind == "mfma" for i in self.ins)
        c = 0
        for i in self.ins:
            if i.kind == "mfma": c += 8
            elif "trans" in i.flags: c += 8
            elif i.op == "s_nop": c += 4 * i.ws()
            else: c += 4
        self.cost = c
        self.after = []
        self.minready = 0
        self.ext_only = False

def is_mem(i):
    return i.kind in ("ds", "vmem", "smem")

def edge_latency(p, c, typ):
    pl = p.ins[-1]
    lat = p.cost
    if typ == "raw":
        for i in p.ins:
            if i.kind == "ds" and "load" in i.flags and (i.writes & c.reads): lat = max(lat, p.cost + LAT_DS)
            if i.kind == "vmem" and "load" in i.flags and (i.writes & c.reads): lat = max(lat, p.cost + LAT_VM)
    n = 0
    for pi in p.ins:
        for ci in c.ins:
            if ci.kind in ("label", "dir", "ctl", "branch"): continue
            n = max(n, need(pi, ci))
    if n:
        lat = max(lat, 4 * (n + 1) + (4 if p.is_mfma else 0))
    if p.is_mfma and c.is_mfma:
        lat = max(lat, 16)
    return lat

class Block:
    def __init__(self):
        self.nodes = []
    def add(self, texts, rd=(), wr=(), wait_done=(), bias=0, name=None, after=(), minready=0):
        n = Node(texts, rd, wr, wait_done, bias, name)
        n.after = list(after)
        n.minready = minready
        n.idx = len(self.nodes)
        self.nodes.append(n)
        return n
    __call__ = add

    def build(self):
        nodes = self.nodes
        lastw = {}
        readers = {}
        def link(p, c, lat):
            if p is c: return
            p.succ.append((c, lat)); c.pred.append((p, lat))
        for c in nodes:
            edges = {}
            def ed(p, typ):
                l = edge_latency(p, c, typ)
                edges[p] = max(edges.get(p, 0), l)
            for r in c.reads:
                if r in lastw: ed(lastw[r], "raw")
            for r in c.writes:
                if r in lastw:
                    ed(lastw[r], "waw")
                for q in readers.get(r, []):
                    ed(q, "war")
            for p in c.wait_done:
                if c.ext_only: continue
                l = p.cost
                if any(i.kind == "ds" for i in p.ins):
                    l += LAT_DS if any("load" in i.flags for i in p.ins) else LAT_DSW
                if any(i.kind == "vmem" for i in p.ins): l += LAT_VM
                edges[p] = max(edges.get(p, 0), l)
            for p in c.after:
                edges[p] = max(edges.get(p, 0), p.cost)
            for p, l in edges.items():
                if any(i.op == "s_barrier" for i in p.ins): l += LAT_BAR
                link(p, c, l)
            for r in c.writes:
                lastw[r] = c; readers[r] = []
            for r in c.reads:
                if r not in c.writes:
                    readers.setdefault(r, []).append(c)
                else:
                    readers[r] = []
        for n in reversed(nodes):
            pr = n.cost
            for s, l in n.succ:
                pr = max(pr, l + s.prio)
            n.prio = pr + n.bias

    def schedule(self, verbose=False, mfma_guard=6):
        self.build()
        nodes = self.nodes
        for n in nodes:
            n.npred = len(n.pred); n.ready = n.minready; n.t = None
        avail = [n for n in nodes if n.npred == 0]
        t = 0
        mfma_free = 0
        order = []
        while avail:
            def start(n):
                s = max(n.ready, t)
                if n.is_mfma: s = max(s, mfma_free)
                return s
            now = [n for n in avail if start(n) <= t]
            if not now:
                t = min(start(n) for n in avail)
                continue
            now.sort(key=lambda n: (-n.prio, n.idx))
            pick = None
            for cand in now:
                if cand.is_mfma:
                    blocked = False
                    for o in avail:
                        if o is cand or not o.is_mfma: continue
                        if o.prio > cand.prio + 16 and t < o.ready < t + 16 - mfma_guard:
                            blocked = True; break
                    if blocked: continue
                pick = cand; break
            if pick is None:
                t += 4
                continue
            pick.t = t
            order.append(pick)
            avail.remove(pick)
            if pick.is_mfma: mfma_free = t + 16
            for s, l in pick.succ:
                s.ready = max(s.ready, t + l)
                s.npred -= 1
                if s.npred == 0: avail.append(s)
            t += pick.cost
        assert len(order) == len(nodes), (len(order), len(nodes))
        self.order = order
        self.tend = t
        return order

def insert_waits(order, vm_pending=None, lg_pending=None, end_wait=None):
    out = []
    vm = list(vm_pending or [])
    lg = list(lg_pending or [])
    def emit_wait(nvm, nlg):
        parts = []
        nonlocal vm, lg
        if nvm is not None and nvm < len(vm):
            parts.append(f"vmcnt({min(nvm, 63)})")
            vm = vm[len(vm) - nvm:] if nvm > 0 else []
        if nlg is not None and nlg < len(lg):
            k = min(nlg, 15)
            parts.append(f"lgkmcnt({k})")
            lg = lg[len(lg) - k:] if k > 0 else []
        if parts: out.append("s_waitcnt " + " ".join(parts))
    for n in order:
        first = True
        for i in n.ins:
            if i.kind in ("label", "dir"):
                out.append(i.text); continue
            touched = i.reads | i.writes
            nvm = nlg = None
            for q, which in ((vm, "vm"), (lg, "lg")):
                for k, (regs, node) in enumerate(q):
                    hit = False
                    ov = regs & touched
                    if ov:
                        hit = True
                        if not (ov & i.reads) and ((which == "vm" and i.kind == "vmem") or (which == "lg" and i.kind == "ds")):
                            hit = False
                    if first and node in n.wait_done: hit = True
                    if hit:
                        left = len(q) - 1 - k
                        if which == "vm": nvm = left if nvm is None else min(nvm, left)
                        else: nlg = left if nlg is None else min(nlg, left)
            emit_wait(nvm, nlg)
            out.append(i.text)
            first = False
            if i.kind == "vmem":
                vm.append((set(i.writes) if "load" in i.flags else set(), n))
                assert len(vm) <= 63, "vmcnt overflow"
            elif i.kind == "ds":
                lg.append((set(i.writes) if "load" in i.flags else set(), n))
            elif i.kind == "smem":
                raise ValueError("no smem inside scheduled regions")
    return out, vm, lg

def dump(order):
    s = []
    for n in order:
        s.append(f"{n.t:5d} p{n.prio:5d} {' | '.join(i.text for i in n.ins)}")
    return "\n".join(s)
```

```python
import sys
from asmdsl import *
from layout import *
import roles as R
import chain as C
NAME = "parallel_sum__memory_aug_recurrent_mem_tr__dense_activation_relu__prompt"
out_path = sys.argv[1] if len(sys.argv) > 1 and sys.argv[1].endswith(".s") else f"cdna_kernels/{NAME}.s"
hdr = open(f"cdna_kernels/{NAME}.s.ref").read().split("; Override launch geometry")[0]

def finish(P, name, nfv, accum, forces=((),)):
    n = P.fix_hazards()
    errs = []
    for f in forces: errs += P.check_waits(name, force=set(f))
    print(name, "nops", n, "maxregs", P.maxregs(), "instrs", len(P.ins))
    for e in errs[:20]: print(e)
    return kernel_text(name, P, nfv, accum)

kern = []
P = Prog()
P("s_cmp_ge_u32 s2, 128\n s_cbranch_scc1 LN_X")
R.load_ptrs(P)
P("s_mov_b32 s60, s2")
R.emit_ln(P, 60)
P.label("LN_X"); P("s_endpgm")
kern.append(finish(P, "ln_kernel", 96, 96, [(), ("LN_4",)]))
P = Prog()
P("s_cmp_ge_u32 s2, 528\n s_cbranch_scc1 G1_X")
R.load_ptrs(P)
P(f"s_and_b32 s{R.S_RB}, s2, 7\n s_lshr_b32 s4, s2, 3")
P("s_cmp_lt_u32 s4, 16\n s_cbranch_scc1 G1_k\n s_cmp_lt_u32 s4, 32\n s_cbranch_scc1 G1_v\n s_cmp_lt_u32 s4, 50\n s_cbranch_scc1 G1_h")
P(f"s_sub_u32 s{R.S_CB}, s4, 50"); R.emit_tile(P, "q", "G1q"); P("s_endpgm")
P.label("G1_k"); P(f"s_mov_b32 s{R.S_CB}, s4"); R.emit_tile(P, "k", "G1k"); P("s_endpgm")
P.label("G1_v"); P(f"s_sub_u32 s{R.S_CB}, s4, 16"); R.emit_tile(P, "v", "G1v"); P("s_endpgm")
P.label("G1_h"); P(f"s_sub_u32 s{R.S_CB}, s4, 32"); R.emit_tile(P, "h", "G1h")
P.label("G1_X"); P("s_endpgm")
kern.append(finish(P, "gemm1_kernel", 512, 256, [(), ("G1_k",), ("G1_v",), ("G1_h",)]))
P = Prog()
P("s_cmp_ge_u32 s2, 256\n s_cbranch_scc1 CH_X")
P("s_and_b32 s3, s2, 7\n s_cmp_lg_u32 s3, 0\n s_cbranch_scc1 F2_go")
C.emit_chain(P)
P.label("F2_go")
P("s_and_b32 s4, s2, 7\n s_cmp_lt_u32 s4, 2\n s_cbranch_scc1 F2_X\n s_lshr_b32 s5, s2, 3\n s_cmp_ge_u32 s5, 24\n s_cbranch_scc1 F2_X")
R.load_ptrs(P)
P(f"s_sub_u32 s{R.S_KS}, s4, 2\n s_and_b32 s{R.S_RB}, s5, 7\n s_lshr_b32 s{R.S_CB}, s5, 3")
R.emit_tile(P, "f", "F2t")
P.label("F2_X"); P("s_endpgm")
fs = []
for w in range(4):
    fs.append((f"CH_gof{w}",)); fs.append((f"CH_gos{w}", "CH_slow"))
fs.append(("F2_go",))
kern.append(finish(P, "chain_kernel", 512, 256, fs))
P = Prog()
P("s_cmp_ge_u32 s2, 256\n s_cbranch_scc1 TL_X")
R.load_ptrs(P)
P(f"s_and_b32 s{R.S_SEG}, s2, 7\n s_lshr_b32 s4, s2, 3\n s_lshr_b32 s{R.S_HG}, s4, 2\n s_and_b32 s{R.S_CQ}, s4, 3")
R.emit_tail_setup(P, "old")
P.label("TL_loop")
R.emit_tail_loads(P)
R.emit_tail_sx(P)
X = R.emit_tail_km_loads(P)
R.emit_tail_rest(P, X)
P(f"s_add_u32 s{R.S_SEG}, s{R.S_SEG}, 8\n s_cmp_lt_u32 s{R.S_SEG}, 64\n s_cbranch_scc1 TL_loop")
P.label("TL_X"); P("s_endpgm")
kern.append(finish(P, "tail_kernel", 512, 256))
P = Prog()
P("s_cmp_ge_u32 s2, 1152\n s_cbranch_scc1 FN_X")
R.load_ptrs(P)
P(f"s_mul_i32 s4, s2, 3641\n s_lshr_b32 s{R.S_SEG}, s4, 16\n s_mul_i32 s4, s{R.S_SEG}, 18\n s_sub_u32 s4, s2, s4\n s_lshl_b32 s4, s4, 2\n s_add_u32 s{R.S_U}, s4, s{R.S_W}")
R.emit_final(P)
P.label("FN_X"); P("s_endpgm")
kern.append(finish(P, "final_kernel", 96, 96))

lines = ["; @launch kernel=ln_kernel grid=(128,1,1) block=(256,1,1) lds=512",
         "; @launch kernel=gemm1_kernel grid=(528,1,1) block=(256,1,1) lds=131072",
         "; @launch kernel=chain_kernel grid=(256,1,1) block=(256,1,1) lds=163840",
         "; @launch kernel=tail_kernel grid=(256,1,1) block=(256,1,1) lds=131072",
         "; @launch kernel=final_kernel grid=(1152,1,1) block=(256,1,1) lds=0"]
txt = hdr + "\n".join(lines) + "\n.amdgcn_target \"amdgcn-amd-amdhsa--gfx950\"\n" + "\n".join(kern)
open(out_path, "w").write(txt)
print("bytes", len(txt))
for sg in range(1152): assert (sg * 3641 >> 16) == sg // 18
```

```python
from asmdsl import *
from sched import Block, insert_waits, dump
from layout import *

MA = 0
LB0, LB1 = 36, 44
QA, KA, VA = 52, 60, 68
IDX, P1, PERM = 76, 77, 78
L_M = 0
L_O = 8192
L_SC = 10240
L_MM = 14336
L_T = 15360
L_SLOT = 16384
S_HEAD, S_W = 3, 4
S_MST, S_UOFF = 5, 6
WS = 8
TS = 12
S_STEP = 16
S_KX, S_VX, S_KM = 17, 18, 19
S_PL = 20
S_PS = 24
S_MRD = 27
S_MWR, S_MPO = 30, 31
M_HI0, M_ODD, M_H1S = 32, 34, 36
M_SEL = 56
B1_READY = 70
QBIAS = 150
STBIAS = 30
S_C = 40
S_SPIN = 41
S_T = 42
S_PDELTA = 48
S_PPO = 49
S_FLAG = 51
S_T0 = 52

LDSQ = (8,)
LDSK = (3, 7)
LDSV = (1, 3, 5)
SLOT = {("q", 8): 0, ("k", 3): 1, ("k", 7): 2, ("v", 1): 3, ("v", 3): 4, ("v", 5): 5,
        ("o8", 0): 6, ("o3", 0): 7, ("o3", 1): 8}

def pieces():
    P = []
    for m, lds in (("q", LDSQ), ("k", LDSK), ("v", LDSV)):
        for kc in range(9):
            if kc not in lds: P.append((m, kc))
    for u in range(3):
        for kc in range(2):
            P.append((f"o{u}", kc))
    res = sorted(SLOT.items(), key=lambda x: x[1])
    for k, sl in res: P.append(k)
    assert len(P) == 36
    return P

def frag_regs():
    F = {}
    i = 0
    for (m, kc) in pieces()[:27]:
        for t in range(2):
            F[(m, kc, t)] = 80 + 8 * i if i < 22 else 256 + 8 * (i - 22)
            i += 1
    assert i == 54
    return F
FR = frag_regs()

def own(w):
    return [w, w + 4] + ([8] if w == 3 else [])
def others(w):
    o = [kc for kc in range(8) if kc not in own(w)]
    return ([8] if w != 3 else []) + o
def bset(w):
    return [MA + 4 * kc for kc in others(w)[-len(own(w)):]]

def smf(d, a_, b, idx=None):
    return f"v_smfmac_f32_16x16x64_bf16 {v(d,4)}, {a_}, {r(b,8)}, {v(IDX if idx is None else idx)}"

def lds_frag_addr(w, slot, t):
    return L_SLOT + slot * 16384 + w * 4096 + t * 2048

def lds_piece_load(B, w, slot, bufs, ts=(0, 1), after=(), bias=0, areg=None):
    ad0 = lds_frag_addr(w, slot, 0)
    win = ad0 // 65536 * 65536
    out = []
    if win == 0:
        areg = P1
    elif areg is None:
        areg = bufs[-1] + 7
        B(f"v_add_u32 {v(areg)}, {win}, {v(P1)}", after=after, bias=bias)
    for t_, LB in zip(ts, bufs):
        off = lds_frag_addr(w, slot, t_) - win
        out.append(B(f"ds_read_b128 {v(LB,4)}, {v(areg)} offset:{off}", after=after, bias=bias))
        out.append(B(f"ds_read_b128 {v(LB+4,4)}, {v(areg)} offset:{off+1024}", after=after, bias=bias))
    return out

def zero(B, reg, n, **kw):
    out = []
    for i in range(0, n, 2):
        out.append(B(f"v_mov_b64 {v(reg+i,2)}, 0", **kw))
    return out

QP = "quad_perm:[2,3,0,1] row_mask:0xf bank_mask:0xf"

def fold_tile(B, T):
    B(f"v_add_f32 {v(T)}, {v(T)}, {v(T+1)}")
    B(f"v_add_f32 {v(T+2)}, {v(T+2)}, {v(T+3)}")


KN = dict(b1=70, bread=150, qbias=150, stbias=150, vbias=0, pubbias=600, stag1=0, stag2=0, pace1=-1, early1=0, pace2=-1, b0=1, pub=1, flag=1, dma=1, dmabias=800, dmat=0, tb1bias=600, outbias=150, o8bias=100)
R_H1L, R_IDX2, R_WOST, R_AW2 = KA, KA + 1, KA + 2, KA + 3
R_H1S = KA + 6

def main_region(w, st):
    from sched import Node
    B = Block()
    ow = own(w)
    oth = others(w)
    bs = bset(w)
    ext = [Node(f"ds_read_b128 {v(LB0,4)}, {v(P1)}"), Node(f"ds_read_b128 {v(LB0+4,4)}, {v(P1)}"),
           Node(f"ds_read_b128 {v(LB1,4)}, {v(P1)}"), Node(f"ds_read_b128 {v(LB1+4,4)}, {v(P1)}")]
    ext_w = [Node(f"ds_write_b128 {v(P1)}, {v(MA+4*kc,4)} offset:{kc*1024}") for kc in ow]
    ext_vm = [Node(f"buffer_load_dwordx4 {v(b,4)}, {v(P1)}, {s(WS,4)}, 0 offen") for b in bs]
    mA = lambda kc: v(MA + 4 * kc, 4)
    b1 = B("s_barrier", name="B1", bias=0, minready=KN["b1"])
    b1.wait_done = ext_w
    b1.ext_only = True
    for kc in oth:
        B(f"ds_read_b128 {mA(kc)}, {v(P1)} offset:{L_M + kc*1024}", after=[b1],
          minready=KN["bread"] if MA + 4 * kc in bs else 0)
    kx = [B(f"buffer_load_dwordx4 {v(VA,4)}, {v(P1)}, {s(WS,4)}, {s(S_KX)} offen", after=[b1], bias=100),
          B(f"buffer_load_dwordx4 {v(VA+4,4)}, {v(P1)}, {s(WS,4)}, {s(S_KX)} offen offset:1024", after=[b1], bias=100)]
    def acc(m, t): return {"q": QA, "k": KA, "v": VA}[m] + 4 * t
    def mm(m, kc, t, breg=None):
        b = FR[(m, kc, t)] if breg is None else breg
        return B(smf(acc(m, t), mA(kc), b), rd=["pj"], wr=["pj"])
    def mm2(m, kc):
        l = kc in {"q": LDSQ, "k": LDSK}[m]
        mm(m, kc, 0, LB0 if l else None); mm(m, kc, 1, LB1 if l else None)
    LBS = (LB0, LB1)
    if w == 3:
        mm2("q", 8); lds_piece_load(B, w, SLOT[("k", 3)], LBS)
        mm2("q", 3); mm2("q", 7); mm2("k", 8)
        qrest = list(oth)
        mm2("q", qrest[0]); mm2("k", 3); lds_piece_load(B, w, SLOT[("k", 7)], LBS)
        for kc in qrest[1:4]: mm2("q", kc)
        mm2("k", 7); lds_piece_load(B, w, SLOT[("v", 1)], LBS)
        for kc in qrest[4:]: mm2("q", kc)
        krest = list(oth)
    else:
        for kc in ow: mm2("q", kc)
        for kc in ow: mm2("k", kc)
        mm2("q", 8); lds_piece_load(B, w, SLOT[("k", 3)], LBS)
        qrest = [kc for kc in oth if kc != 8]
        for kc in qrest[:3]: mm2("q", kc)
        mm2("k", 3); lds_piece_load(B, w, SLOT[("k", 7)], LBS)
        for kc in qrest[3:]: mm2("q", kc)
        krest = [kc for kc in oth if kc not in LDSK]
    fold_tile(B, QA); fold_tile(B, QA + 4)
    B(f"v_cvt_pk_bf16_f32 {v(QA)}, {v(QA)}, {v(QA+2)}")
    B(f"v_cvt_pk_bf16_f32 {v(QA+1)}, {v(QA+4)}, {v(QA+6)}")
    B(f"v_mfma_f32_16x16x16_bf16 {v(QA+4,4)}, {v(QA,2)}, {v(PERM,2)}, 0")
    B(f"v_cvt_pk_bf16_f32 {v(QA+2)}, {v(QA+4)}, {v(QA+5)}")
    B(f"v_cvt_pk_bf16_f32 {v(QA+3)}, {v(QA+6)}, {v(QA+7)}")
    B(f"v_mov_b32_dpp {v(QA+4)}, {v(QA+2)} {QP}")
    B(f"v_mov_b32_dpp {v(QA+5)}, {v(QA+3)} {QP}")
    sx0 = B(f"v_mfma_f32_16x16x32_bf16 {v(VA,4)}, {v(VA,4)}, {v(QA+2,4)}, 0")
    sx1 = B(f"v_mfma_f32_16x16x32_bf16 {v(VA+4,4)}, {v(VA+4,4)}, {v(QA+2,4)}, 0")
    for i in range(4):
        B(f"v_cndmask_b32 {v(VA+i)}, {v(VA+4+i)}, {v(VA+i)}, {s(M_HI0,2)}")
    scw = B(f"ds_write_b128 {v(P1)}, {v(VA,4)} offset:{L_SC + w*1024}")
    for n in zero(B, VA, 8): n.bias = KN["qbias"]
    if w == 3:
        for kc in krest: mm("k", kc, 0)
    else:
        mm("k", krest[0], 0); mm("k", krest[1], 0)
        mm2("k", 7); lds_piece_load(B, w, SLOT[("v", 1)], LBS)
        for kc in krest[2:]: mm("k", kc, 0)
    fold_tile(B, KA)
    B(f"v_cvt_pk_bf16_f32 {v(KA)}, {v(KA)}, {v(KA+2)}")
    for kc in krest: mm("k", kc, 1)
    fold_tile(B, KA + 4)
    B(f"v_cvt_pk_bf16_f32 {v(KA+1)}, {v(KA+4)}, {v(KA+6)}")
    B(f"v_mfma_f32_16x16x16_bf16 {v(KA+4,4)}, {v(KA,2)}, {v(PERM,2)}, 0")
    B(f"v_cvt_pk_bf16_f32 {v(KA+2)}, {v(KA+4)}, {v(KA+5)}")
    B(f"v_cvt_pk_bf16_f32 {v(KA+3)}, {v(KA+6)}, {v(KA+7)}")
    B(f"v_mov_b32_dpp {v(KA+4)}, {v(KA+2)} {QP}")
    B(f"v_mov_b32_dpp {v(KA+5)}, {v(KA+3)} {QP}")
    SM = QA + 6
    assert SM + 2 == KA
    smm = B(f"v_mfma_f32_16x16x32_bf16 {v(SM,4)}, {v(KA+2,4)}, {v(QA+2,4)}, 0")
    B(f"v_cndmask_b32 {v(SM)}, {v(SM+3)}, {v(SM)}, {s(M_HI0,2)}")
    mmw = B(f"ds_write_b32 {v(P1)}, {v(SM)} offset:{L_MM + 4*w}")
    b2 = B("s_barrier", wait_done=[scw, mmw], name="B2")
    uld = B(f"buffer_load_dwordx4 {v(QA,4)}, {v(P1)}, {s(WS,4)}, {s(S_VX)} offen", after=kx)
    wld = B(f"buffer_load_dwordx4 {v(QA+4,4)}, {v(P1)}, {s(WS,4)}, {s(S_VX)} offen offset:1024", after=kx)
    def mv(kc, t, breg=None):
        b = FR[("v", kc, t)] if breg is None else breg
        return B(smf(acc("v", t), mA(kc), b), rd=["pv"], wr=["pv"], bias=KN["vbias"])
    def vv(kc):
        l = kc in LDSV
        mv(kc, 0, LB0 if l else None); mv(kc, 1, LB1 if l else None)
    assert LDSV == (1, 3, 5)
    vv(1); lds_piece_load(B, w, SLOT[("v", 3)], LBS)
    vv(0); vv(2); vv(3); lds_piece_load(B, w, SLOT[("v", 5)], LBS)
    vv(4); vv(6); vv(8); vv(7); vv(5)
    if KN["dma"]:
        PF = MA + 33
        B(f"v_lshlrev_b32 {v(PF)}, 3, {v(P1)}", lbias=KN["dmabias"])
        B(["s_mov_b64 exec, 0xffff",
           f"s_add_u32 s43, {s(S_KX)}, 8192", f"buffer_load_dword {v(PF)}, {s(WS,4)}, s43 offen lds",
           f"s_add_u32 s43, {s(S_VX)}, 8192", f"buffer_load_dword {v(PF)}, {s(WS,4)}, s43 offen lds",
           "s_mov_b64 exec, -1"], after=[uld, wld, b2], lbias=KN["dmabias"], minready=KN["dmat"])
    fold_tile(B, VA); fold_tile(B, VA + 4)
    B(f"v_cvt_pk_bf16_f32 {v(KA+4)}, {v(VA)}, {v(VA+6)}")
    B(f"v_cvt_pk_bf16_f32 {v(KA+5)}, {v(VA+4)}, {v(VA+2)}")
    if KN["pub"]:
        pub = B(f"buffer_store_dwordx4 {v(KA+2,4)}, {v(P1)}, {s(WS,4)}, {s(S_KM)} offen {'sc1' if KN['pub'] == 1 else ''}", lbias=KN["pubbias"], after=[uld, wld])
    tb0 = B(f"ds_read_b64 {v(KA,2)}, {v(P1)} offset:{L_T}", after=[b2])
    tb1 = B(f"ds_read_b32 {v(KA+6)}, {v(P1)} offset:{L_T+8}", after=[b2], lbias=KN["tb1bias"])
    X = MA
    rds = []
    rds.append(B(f"ds_read_b128 {v(X+16,4)}, {v(P1)} offset:{L_MM}", after=[b2]))
    for j in range(4):
        rds.append(B(f"ds_read_b128 {v(X+4*j,4)}, {v(P1)} offset:{L_SC + j*1024}", after=[b2]))
    for i in range(4):
        B(f"v_add_f32 {v(X+i)}, {v(X+i)}, {v(X+4+i)}")
    for i in range(4):
        B(f"v_add_f32 {v(X+8+i)}, {v(X+8+i)}, {v(X+12+i)}")
    B(f"v_add_f32 {v(X+16)}, {v(X+16)}, {v(X+17)}")
    B(f"v_add_f32 {v(X+18)}, {v(X+18)}, {v(X+19)}")
    B(f"v_add_f32 {v(X+4)}, {v(X+16)}, {v(X+18)}")
    for i in range(4):
        B(f"v_add_f32 {v(X+i)}, {v(X+i)}, {v(X+8+i)}")
    M = X + 5; T = X + 6
    B(f"v_max3_f32 {v(M)}, {v(X)}, {v(X+1)}, {v(X+4)}")
    B(f"v_max3_f32 {v(M)}, {v(M)}, {v(X+2)}, {v(X+3)}")
    B(f"v_max_f32_dpp {v(M)}, {v(M)}, {v(M)} {QP}")
    B(f"v_mov_b32 {v(T)}, {v(M)}")
    B(f"v_permlane16_swap_b32 {v(M)}, {v(T)}")
    B(f"v_max_f32 {v(M)}, {v(M)}, {v(T)}")
    B(f"v_mov_b32 {v(T)}, {v(M)}")
    B(f"v_permlane32_swap_b32 {v(M)}, {v(T)}")
    B(f"v_max_f32 {v(M)}, {v(M)}, {v(T)}")
    B(f"v_mul_f32 {v(M)}, {s(S_C)}, {v(M)}")
    for i in range(5):
        B(f"v_fma_f32 {v(X+i)}, {v(X+i)}, {s(S_C)}, -{v(M)}")
    for i in range(5):
        B(f"v_exp_f32 {v(X+i)}, {v(X+i)}")
    BP = X + 12; BU = X + 8; BW = X + 10
    B(f"v_cvt_pk_bf16_f32 {v(M)}, {v(X)}, {v(X+1)}")
    B(f"v_cvt_pk_bf16_f32 {v(T)}, {v(X+2)}, {v(X+3)}")
    B(f"v_cndmask_b32 {v(BP)}, 0, {v(M)}, {s(M_HI0,2)}")
    B(f"v_cndmask_b32 {v(BP+1)}, 0, {v(T)}, {s(M_HI0,2)}")
    B(f"v_cndmask_b32 {v(BP+2)}, {v(M)}, 0, {s(M_HI0,2)}")
    B(f"v_cndmask_b32 {v(BP+3)}, {v(T)}, 0, {s(M_HI0,2)}")
    B(f"v_cndmask_b32 {v(X+16)}, 16, 0, {s(M_HI0,2)}", bias=50)
    B(f"v_cvt_pk_bf16_f32 {v(X+7)}, {v(X+4)}, 0")
    B(f"v_lshlrev_b32 {v(BU)}, {v(X+16)}, {v(X+7)}")
    B(f"v_lshlrev_b32 {v(BW+1)}, {v(X+16)}, {v(X+7)}")
    B(f"v_mov_b32 {v(BU+1)}, 0", bias=50)
    B(f"v_mov_b32 {v(BW)}, 0", bias=50)
    U = QA; W = QA + 4
    B(f"v_mfma_f32_16x16x32_bf16 {v(U,4)}, {v(U,4)}, {v(BP,4)}, 0")
    B(f"v_mfma_f32_16x16x32_bf16 {v(W,4)}, {v(W,4)}, {v(BP,4)}, 0")
    B(f"v_mfma_f32_16x16x16_bf16 {v(U,4)}, {v(KA+4,2)}, {v(BU,2)}, {v(U,4)}")
    B(f"v_mfma_f32_16x16x16_bf16 {v(W,4)}, {v(KA+4,2)}, {v(BW,2)}, {v(W,4)}")
    B(f"v_add_f32 {v(X)}, {v(X)}, {v(X+1)}")
    B(f"v_add_f32 {v(X+2)}, {v(X+2)}, {v(X+3)}")
    B(f"v_add_f32 {v(X)}, {v(X)}, {v(X+4)}")
    B(f"v_add_f32 {v(X)}, {v(X)}, {v(X+2)}")
    B(f"v_add_f32_dpp {v(X)}, {v(X)}, {v(X)} {QP}")
    B(f"v_mov_b32 {v(X+1)}, {v(X)}")
    B(f"v_permlane16_swap_b32 {v(X)}, {v(X+1)}")
    B(f"v_add_f32 {v(X)}, {v(X)}, {v(X+1)}")
    B(f"v_mov_b32 {v(X+1)}, {v(X)}")
    B(f"v_permlane32_swap_b32 {v(X)}, {v(X+1)}")
    B(f"v_add_f32 {v(X)}, {v(X)}, {v(X+1)}")
    B(f"v_rcp_f32 {v(X)}, {v(X)}")
    P2 = X + 17
    B(f"v_and_b32 {v(P2)}, 0xffff, {v(KA)}")
    for i in range(4):
        B(f"v_add_f32_dpp {v(U+i)}, {v(W+i)}, {v(U+i)} {QP}")
    for i in range(4):
        B(f"v_mul_f32 {v(U+i)}, {v(U+i)}, {v(X)}")
    B(f"v_cvt_pk_bf16_f32 {v(U)}, {v(U)}, {v(U+1)}")
    B(f"v_cvt_pk_bf16_f32 {v(U+1)}, {v(U+2)}, {v(U+3)}")
    ow_ = B(f"ds_write_b64 {v(P2)}, {v(U,2)} offset:{L_O + w*512}")
    PO = 24
    if w < 3:
        pz = [B(f"v_mov_b64 {v(PO,2)}, -1", bias=60), B(f"v_mov_b64 {v(PO+2,2)}, -1", bias=60)]
        for i in range(3):
            B(f"buffer_store_dwordx4 {v(PO,4)}, {v(P1)}, {s(WS,4)}, {s(S_PPO)} offen offset:{1024*i} {st}", bias=40, after=[uld, wld])
        if w == 0:
            B([f"s_mov_b64 exec, 0x3ffff",
               f"buffer_store_dwordx4 {v(PO,4)}, {v(P1)}, {s(WS,4)}, {s(S_MPO)} offen {st}",
               "s_mov_b64 exec, -1"], bias=40, after=[uld, wld])
    RO, RO8 = 14, 15
    B(f"v_and_b32 {v(RO)}, 0xffff, {v(KA+1)}")
    B(f"v_and_b32 {v(RO8)}, 0x80, {v(P1)}")
    B(f"v_lshl_add_u32 {v(RO8)}, {v(RO8)}, 3, {v(RO)}")
    B(f"v_lshrrev_b32 {v(R_IDX2)}, 16, {v(KA+1)}")
    B(f"v_lshrrev_b32 {v(R_H1L)}, 12, {v(KA)}")
    B(f"v_and_b32 {v(R_WOST)}, 0xffff, {v(KA+6)}", lbias=300)
    B(f"v_add_u32 {v(R_AW2)}, 131072, {v(P1)}")
    B(f"v_lshrrev_b32 {v(R_H1S)}, 16, {v(KA+6)}")
    ACC = {3: 16, 2: 20, 8: 24, 0: 28, 1: 32}
    for u in (8, 0, 1, 3, 2): zero(B, ACC[u], 4)
    lds_piece_load(B, w, SLOT[("o8", 0)], LBS)
    lds_piece_load(B, w, SLOT[("o3", 0)], (VA,), ts=(0,), areg=R_AW2)
    b3 = B("s_barrier", wait_done=[ow_], name="B3")
    OA = MA; O8 = QA
    for u in range(2):
        B(f"ds_read_b128 {v(O8+4*u,4)}, {v(RO8)} offset:{L_O + 512*u}", after=[b3], bias=40)
    oar = []
    for kc in range(4):
        oar.append(B(f"ds_read_b128 {v(OA+4*kc,4)}, {v(RO)} offset:{L_O + 512*kc}", after=[b3]))
    def wo(u, kc, breg=None, areg=None):
        b = FR[(f"o{u}", kc >> 1, kc & 1)] if breg is None else breg
        return B(smf(ACC[u], v((OA + 4 * kc) if areg is None else areg, 4), b, R_IDX2), rd=["wo"], wr=["wo"])
    nst = [0]
    def out(u):
        A_ = ACC[u]
        B(f"v_cvt_pk_bf16_f32 {v(A_)}, {v(A_)}, {v(A_+1)}", lbias=KN["outbias"])
        B(f"v_cvt_pk_bf16_f32 {v(A_+1)}, {v(A_+2)}, {v(A_+3)}", lbias=KN["outbias"])
        B(f"buffer_store_dwordx2 {v(A_,2)}, {v(R_WOST)}, {s(WS,4)}, {s(S_PS + (u>>1))} offen offset:{(u&1)*2048} {st}", lbias=KN["stbias"])
    wo(8, 0, LB0, O8); wo(8, 1, LB1, O8 + 4)
    lds_piece_load(B, w, SLOT[("o3", 0)], (LB0,), ts=(1,), areg=R_AW2)
    lds_piece_load(B, w, SLOT[("o3", 1)], (LB1,), ts=(0,), areg=R_AW2)
    wo(3, 0, VA)
    lds_piece_load(B, w, SLOT[("o3", 1)], (VA,), ts=(1,), areg=R_AW2)
    A_ = ACC[8]
    lb = KN["o8bias"]
    B(f"v_permlane32_swap_b32 {v(A_)}, {v(A_+2)}", lbias=lb)
    B(f"v_permlane32_swap_b32 {v(A_+1)}, {v(A_+3)}", lbias=lb)
    B(f"v_add_f32 {v(A_)}, {v(A_)}, {v(A_+2)}", lbias=lb)
    B(f"v_add_f32 {v(A_+1)}, {v(A_+1)}, {v(A_+3)}", lbias=lb)
    B(f"v_cvt_pk_bf16_f32 {v(A_+1)}, {v(A_)}, {v(A_+1)}", lbias=lb)
    B(f"v_mov_b32 {v(A_)}, {v(A_+1)}", lbias=lb)
    B(f"v_permlane32_swap_b32 {v(A_)}, {v(A_+1)}", lbias=lb)
    B(["s_mov_b32 exec_hi, 0",
       f"buffer_store_dwordx2 {v(A_,2)}, {v(R_WOST)}, {s(WS,4)}, {s(S_PS + 2)} offen {st}",
       "s_mov_b32 exec_hi, -1"], wait_done=oar, lbias=lb)
    for kc in range(4): wo(0, kc)
    out(0)
    for kc in range(4): wo(1, kc)
    out(1)
    wo(3, 1, LB0); wo(3, 2, LB1); wo(3, 3, VA)
    out(3)
    for kc in range(4): wo(2, kc)
    out(2)
    return B, ext + ext_w, ext_vm


S_RDB = 72
S_MPB, S_H288 = 38, 39
SRD_Q, SRD_K, SRD_V, SRD_O = 56, 60, 64, 68
DBG_BAR, DBG_XMAX, DBG_XMIN, DBG_PROG = 0, 4, 8, 128
SPIN_BUDGET = 400000

def srd(P, dst, ka_off, nbytes, tmp=42):
    P(f"s_load_dwordx2 {s(dst,2)}, s[0:1], {ka_off}")
    P(f"s_mov_b32 {s(dst+2)}, {nbytes}")
    P(f"s_mov_b32 {s(dst+3)}, 0x00020000")

def lane_consts(P):
    P("""v_and_b32 v1, 63, v0
         v_and_b32 v2, 15, v1
         v_lshrrev_b32 v3, 4, v1
         v_lshrrev_b32 v4, 2, v2
         v_and_b32 v5, 1, v2
         v_lshl_add_u32 v4, v4, 1, v5
         v_bfe_u32 v5, v2, 1, 1
         v_and_b32 v6, 1, v3
         v_lshrrev_b32 v7, 1, v3""")

def emit_tables(P):
    P(f"v_lshlrev_b32 {v(P1)}, 4, v1")
    P(f"v_mov_b32 {v(IDX)}, 0x4444")
    P(f"v_mov_b32 v8, 0xeeee")
    P("v_and_b32 v9, 1, v2\n v_cmp_eq_u32 vcc, 0, v9")
    P(f"v_cndmask_b32 {v(IDX)}, v8, {v(IDX)}, vcc")
    P("v_mov_b32 v9, 0x3f80\n v_mov_b32 v10, 0x3f800000\n v_lshlrev_b32 v8, 2, v3")
    for h in range(2):
        P(f"v_add_u32 v11, {2*h}, v8")
        P(f"v_cmp_eq_u32 vcc, v11, v2")
        P(f"v_cndmask_b32 {v(PERM+h)}, 0, v9, vcc")
        P(f"v_add_u32 v11, 1, v11")
        P(f"v_cmp_eq_u32 vcc, v11, v2")
        P(f"v_cndmask_b32 {v(PERM+h)}, {v(PERM+h)}, v10, vcc")
    P("v_lshl_add_u32 v12, v5, 1, v7\n v_lshlrev_b32 v12, 7, v12\n v_lshl_add_u32 v12, v4, 4, v12\n v_lshl_add_u32 v12, v6, 3, v12")
    P("v_lshlrev_b32 v13, 10, v7\n v_lshl_add_u32 v13, v2, 4, v13\n v_lshl_add_u32 v13, v6, 3, v13")
    P("v_and_b32 v18, 7, v2\n v_lshlrev_b32 v18, 4, v18\n v_lshl_add_u32 v18, v3, 7, v18")
    P("v_mov_b32 v19, 0x4444\n v_mov_b32 v8, 0xeeee\n v_cmp_gt_u32 vcc, 8, v2\n v_cndmask_b32 v19, v8, v19, vcc")
    P("v_lshrrev_b32 v8, 1, v2\n v_and_b32 v9, 1, v2\n v_lshl_add_u32 v9, v3, 1, v9")
    P("v_mul_u32_u24 v9, 576, v9\n v_add_u32 v14, v8, v9")
    P("v_and_b32 v11, 7, v2\n v_lshlrev_b32 v11, 5, v11\n v_lshl_add_u32 v15, v3, 2, v11")
    P("v_lshl_or_b32 v12, v14, 16, v12\n v_lshl_or_b32 v14, v15, 16, v13\n v_lshl_or_b32 v13, v19, 16, v18\n v_mov_b32 v15, 0")
    P(f"ds_write_b128 {v(P1)}, v[12:15] offset:{L_T}")

def emit_weight_fill(P):
    PC = pieces()
    P("v_lshrrev_b32 v8, 4, v1\n v_and_b32 v9, 15, v1")
    P(f"s_and_b32 s42, {s(S_W)}, 3\n s_lshl_b32 s42, s42, 1")
    P("v_and_b32 v10, 1, v8\n v_or_b32 v10, s42, v10")
    P("v_lshrrev_b32 v11, 1, v9\n v_xor_b32 v11, v11, v10")
    P("v_and_b32 v12, 1, v9\n v_lshlrev_b32 v12, 4, v12")
    P(f"s_lshl_b32 s43, {s(S_W)}, 2\n v_add_u32 v8, s43, v8")
    P("v_lshl_add_u32 v13, v11, 5, v12")
    P("v_lshl_add_u32 v24, v8, 13, v13")
    P("v_mul_u32_u24 v14, 1152, v8\n v_add_u32 v25, v14, v13")
    P("v_lshrrev_b32 v15, 2, v11\n v_mul_u32_u24 v15, 73728, v15")
    P("v_and_b32 v11, 3, v11\n v_lshl_add_u32 v11, v11, 5, v12\n v_add3_u32 v26, v14, v15, v11\n v_add_u32 v26, 1024, v26")
    P("v_bfe_u32 v8, v1, 2, 2\n v_and_b32 v9, 3, v1")
    P("v_and_b32 v10, 1, v8\n v_lshrrev_b32 v11, 1, v8")
    P("v_lshl_add_u32 v12, v11, 3, v10\n v_lshl_add_u32 v12, v6, 2, v12\n v_lshl_add_u32 v12, v7, 4, v12")
    P("v_lshl_add_u32 v13, v6, 1, v10\n v_lshl_add_u32 v13, v11, 2, v13")
    P("v_lshlrev_b32 v12, 8, v12\n v_lshl_add_u32 v12, v9, 3, v12")
    P(f"v_add_u32 v12, {L_SLOT}, v12")
    for t in range(2):
        P(f"s_lshl_b32 s42, {s(S_W)}, 1\n s_add_u32 s42, s42, {t}")
        P(f"v_xor_b32 v14, s42, v13\n v_lshl_add_u32 v{27+t}, v14, 5, v12")
    P("v_lshl_add_u32 v12, v6, 2, v10\n v_lshl_add_u32 v12, v7, 3, v12")
    P("v_lshl_add_u32 v13, v6, 1, v10\n v_lshl_add_u32 v13, v7, 2, v13")
    P(f"v_lshlrev_b32 v14, 2, v11\n v_add_u32 v14, {s(S_W)}, v14\n v_xor_b32 v14, v14, v13")
    P(f"v_lshlrev_b32 v12, 8, v12\n v_lshl_add_u32 v12, v9, 3, v12\n v_lshl_add_u32 v12, v14, 5, v12")
    P(f"v_add_u32 v29, {L_SLOT}, v12\n v_add_u32 v30, 8192, v29")
    P(f"s_lshl_b32 s44, {s(S_HEAD)}, 8")
    P(f"s_mul_i32 s45, {s(S_HEAD)}, 147456")
    P(f"s_lshl_b32 s46, {s(S_W)}, 10\n s_add_u32 s46, s46, {L_SLOT}")
    def dma(p):
        m, kc = PC[p]
        sl = p % 9
        for j in range(4):
            P(f"s_add_u32 m0, s46, {sl*16384 + j*4096}")
            if m in "qkv":
                sr = {"q": SRD_Q, "k": SRD_K, "v": SRD_V}[m]
                P(f"s_add_u32 s47, s44, {(64*kc + 16*j)*8192}")
                P(f"buffer_load_dwordx4 v24, {s(sr,4)}, s47 offen lds")
            elif m == "o8":
                P(f"s_add_u32 s47, s45, {16*j*1152}")
                P(f"buffer_load_dwordx4 v26, {s(SRD_O,4)}, s47 offen lds")
            else:
                u = int(m[1])
                P(f"s_add_u32 s47, s45, {(64*kc + 16*j)*1152 + u*256}")
                P(f"buffer_load_dwordx4 v25, {s(SRD_O,4)}, s47 offen lds")
    for p in range(9): dma(p)
    TMP = (36, 52)
    def writeback(p):
        sl = p % 9
        tb = TMP[p & 1]
        P(f"s_lshl_b32 s42, {s(S_W)}, 12\n s_add_u32 s42, s42, {L_SLOT + sl*16384}")
        P(f"v_add_u32 v31, s42, {v(P1)}")
        for t in range(2):
            for hf in range(2):
                P(f"ds_write_b128 v31, {v(tb + 8*t + 4*hf, 4)} offset:{t*2048 + hf*1024}")
    for p in range(36):
        m, kc = PC[p]
        sl = p % 9
        last = 8 if p == 0 else min(p + 7, 35)
        P(f"s_waitcnt vmcnt({4*(last - p)}) lgkmcnt(0)")
        P("s_barrier")
        if p >= 1 and p + 8 <= 35: dma(p + 8)
        if p - 1 >= 27: writeback(p - 1)
        base = (27, 28) if m in "qkv" else (29, 30)
        for t in range(2):
            P(f"v_add_u32 v{32+t}, {sl*16384}, v{base[t]}")
        for t in range(2):
            dst = FR[(m, kc, t)] if p < 27 else TMP[p & 1] + 8 * t
            for hf in range(2):
                for sb in range(2):
                    P(f"ds_read_b64_tr_b16 {r(dst + 4*hf + 2*sb, 2)}, v{32+t} offset:{sb*512 + hf*(8192 if m in 'qkv' else 4096)}")
    P("s_waitcnt lgkmcnt(0)")
    P("s_barrier")
    writeback(35)
    P("s_waitcnt lgkmcnt(0)")

def emit_init_rings(P):
    P(f"s_mul_i32 s42, {s(S_HEAD)}, 18")
    P("v_add_u32 v8, s42, v0")
    P("v_and_b32 v9, 7, v8\n v_lshrrev_b32 v10, 3, v8")
    P("v_mul_u32_u24 v9, 1152, v9\n v_lshl_add_u32 v9, v10, 4, v9")
    P("v_and_b32 v11, 7, v8\n v_lshlrev_b32 v11, 5, v11\n v_lshrrev_b32 v20, 1, v10\n v_lshl_add_u32 v11, v20, 8, v11\n v_and_b32 v20, 1, v10\n v_lshl_add_u32 v11, v20, 4, v11")
    P("v_lshlrev_b32 v8, 4, v8")
    P("v_mov_b32 v16, -1\n v_mov_b32 v17, -1\n v_mov_b32 v18, -1\n v_mov_b32 v19, -1")
    P("v_cmp_gt_u32 vcc, 18, v0\n s_and_saveexec_b64 s[42:43], vcc")
    lab = P.newlabel("CH_NOM")
    P(f"s_cbranch_execz {lab}")
    P(f"buffer_load_dwordx4 v[12:15], v9, {s(TS,4)}, 0 offen")
    P(f"s_mov_b32 s44, {MR_OFF + MR_SLOT}")
    P(f"buffer_store_dwordx4 v[16:19], v8, {s(WS,4)}, s44 offen sc1")
    P(f"s_mov_b32 s44, {MR_OFF}")
    P("s_waitcnt vmcnt(1)")
    P(f"buffer_store_dwordx4 v[12:15], v11, {s(WS,4)}, s44 offen sc1")
    P.label(lab)
    P("s_mov_b64 exec, s[42:43]")
    P("v_lshlrev_b32 v8, 4, v0")
    P(f"s_mul_i32 s44, {s(S_HEAD)}, 9216\n s_add_u32 s44, s44, {PART_OFF}")
    for sl in range(2):
        for k in range(2):
            P(f"s_add_u32 s45, s44, {sl*PART_SLOT + k*4096}")
            P(f"buffer_store_dwordx4 v[16:19], v8, {s(WS,4)}, s45 offen sc1")
    P("v_cmp_gt_u32 vcc, 64, v0\n s_and_saveexec_b64 s[42:43], vcc")
    lab = P.newlabel("CH_NOP")
    P(f"s_cbranch_execz {lab}")
    for sl in range(2):
        P(f"s_add_u32 s45, s44, {sl*PART_SLOT + 8192}")
        P(f"buffer_store_dwordx4 v[16:19], v8, {s(WS,4)}, s45 offen sc1")
    P.label(lab)
    P("s_mov_b64 exec, s[42:43]")

def emit_group_barrier(P, DBG, force_slow=False):
    P("s_waitcnt vmcnt(0) lgkmcnt(0)")
    P("s_barrier")
    l1 = P.newlabel("CH_GB")
    P(f"s_cmp_lg_u32 {s(S_W)}, 0")
    P(f"s_cbranch_scc1 {l1}_w")
    P("s_getreg_b32 s42, hwreg(HW_REG_XCC_ID)\n s_and_b32 s42, s42, 15")
    P("s_add_u32 s43, s42, 1\n s_sub_u32 s44, 16, s42")
    P("v_mov_b32 v8, s43\n v_mov_b32 v9, s44\n v_mov_b32 v10, 1\n v_mov_b32 v11, 0")
    P("s_mov_b64 exec, 1")
    P(f"buffer_atomic_umax v8, v11, {s(DBG,4)}, 0 offen offset:{DBG_XMAX} sc1")
    P(f"buffer_atomic_umax v9, v11, {s(DBG,4)}, 0 offen offset:{DBG_XMIN} sc1")
    P("s_waitcnt vmcnt(0)")
    P(f"buffer_atomic_add v10, v11, {s(DBG,4)}, 0 offen offset:{DBG_BAR} sc1")
    P.label(f"{l1}_p")
    P(f"buffer_load_dword v8, v11, {s(DBG,4)}, 0 offen offset:{DBG_BAR} sc1")
    P("s_waitcnt vmcnt(0)")
    P("v_readfirstlane_b32 s42, v8")
    P("s_cmp_ge_u32 s42, 32")
    P(f"s_cbranch_scc1 {l1}_d")
    P(f"s_sub_u32 {s(S_SPIN)}, {s(S_SPIN)}, 1")
    P(f"s_cbranch_scc0 {l1}_p")
    P(f"s_mov_b32 {s(S_SPIN)}, 0")
    P.label(f"{l1}_d")
    P("s_mov_b64 exec, -1")
    P.label(f"{l1}_w")
    P("s_barrier")
    P("v_mov_b32 v11, 0")
    P(f"buffer_load_dword v8, v11, {s(DBG,4)}, 0 offen offset:{DBG_XMAX} sc1")
    P(f"buffer_load_dword v9, v11, {s(DBG,4)}, 0 offen offset:{DBG_XMIN} sc1")
    P("s_waitcnt vmcnt(0)")
    P("v_readfirstlane_b32 s42, v8\n v_readfirstlane_b32 s43, v9")
    P("s_add_u32 s42, s42, s43")
    P("s_cmp_eq_u32 s42, 17")
    if force_slow: P("s_cmp_eq_u32 s42, 0")

DB2 = True
DB1 = True

def spin(P, lab_exit):
    P(f"s_sub_u32 {s(S_SPIN)}, {s(S_SPIN)}, 1")
    P(f"s_cbranch_scc1 {lab_exit}")

def poll_order(w):
    return [w, w + 4] if w < 3 else [8, 3, 7]

def emit_poll(P, w, lab, gap):
    po = poll_order(w)
    n = len(po)
    A = [MA + 4 * kc for kc in po]
    Bq = bset(w)
    T = VA
    sreg = lambda kc: S_MRD + own(w).index(kc)
    def issue(R):
        for kc, rg in zip(po, R):
            P(f"buffer_load_dwordx4 {v(rg,4)}, {v(P1)}, {s(WS,4)}, {s(sreg(kc))} offen sc1")
    def check(R, pend, ok, fail):
        wr = lambda i: P(f"ds_write_b128 {v(P1)}, {v(R[i],4)} offset:{L_M + po[i]*1024}")
        if w == 3:
            P(f"s_waitcnt vmcnt({pend+2})")
            P(f"v_max3_u32 {v(T)}, {v(R[0])}, {v(R[0]+1)}, {v(R[0]+2)}")
            P(f"v_max_u32 {v(T)}, {v(T)}, {v(R[0]+3)}")
            P(f"v_cmp_eq_u32 vcc, -1, {v(T)}")
            P(f"s_cbranch_vccnz {fail}")
            wr(0)
            a, b = R[1], R[2]; ia, ib = 1, 2
        else:
            a, b = R[0], R[1]; ia, ib = 0, 1
        P(f"s_waitcnt vmcnt({pend+1})")
        wr(ia)
        P(f"v_max3_u32 {v(T)}, {v(a)}, {v(a+1)}, {v(a+2)}")
        P(f"s_waitcnt vmcnt({pend})")
        wr(ib)
        P(f"v_max3_u32 {v(T+1)}, {v(b)}, {v(b+1)}, {v(b+2)}")
        P(f"v_max3_u32 {v(T)}, {v(T)}, {v(a+3)}, {v(b+3)}")
        P(f"v_max_u32 {v(T)}, {v(T)}, {v(T+1)}")
        P(f"v_cmp_eq_u32 vcc, -1, {v(T)}")
        P(f"s_cbranch_vccz {ok}")
    issue(A)
    gap()
    if not DB2:
        P.label(lab)
        check(A, 0, lab + "_ok", lab + "_f")
        P.label(lab + "_f")
        spin(P, lab + "_x")
        issue(A)
        P(f"s_branch {lab}")
        P.label(lab + "_x")
        P(f"s_mov_b32 {s(S_SPIN)}, 0")
        P.label(lab + "_ok")
        return []
    if w < 3 and KN["stag2"]:
        P(f"s_waitcnt vmcnt({n + 1})")
    issue(Bq)
    P.label(lab)
    check(A, n, lab + "_ok", lab + "_fa")
    P.label(lab + "_fa")
    spin(P, lab + "_x")
    issue(A)
    check(Bq, n, lab + "_okb", lab + "_fb")
    P.label(lab + "_fb")
    issue(Bq)
    P(f"s_branch {lab}")
    P.label(lab + "_x")
    P(f"s_mov_b32 {s(S_SPIN)}, 0")
    P(f"s_branch {lab}_ok")
    P.label(lab + "_okb")
    for a_, b_ in zip(A, Bq):
        P(f"v_mov_b64 {v(a_,2)}, {v(b_,2)}")
        P(f"v_mov_b64 {v(a_+2,2)}, {v(b_+2,2)}")
    P.label(lab + "_ok")
    return Bq

def emit_hop1(P, w, st, lab, gap):
    H1L = R_H1L; H1S = R_H1S
    SEL = 32; T = KA + 4
    DA, DB_ = VA, VA + 4
    def issue(R):
        for i in range(4):
            P(f"buffer_load_dwordx4 {v(R+4*i,4)}, {v(H1L)}, {s(WS,4)}, {s(S_PL+i)} offen sc1")
    def check(R, D, pend, ok):
        P(f"s_waitcnt vmcnt({pend+3})")
        P(f"v_mfma_f32_16x16x32_bf16 {v(D,4)}, {v(R,4)}, {v(SEL,4)}, 0")
        P(f"v_max3_u32 {v(T)}, {v(R)}, {v(R+1)}, {v(R+2)}")
        P(f"s_waitcnt vmcnt({pend+2})")
        P(f"v_mfma_f32_16x16x32_bf16 {v(D,4)}, {v(R+4,4)}, {v(SEL,4)}, {v(D,4)}")
        P(f"v_max3_u32 {v(T)}, {v(T)}, {v(R+3)}, {v(R+4)}")
        P(f"v_max3_u32 {v(T)}, {v(T)}, {v(R+5)}, {v(R+6)}")
        P(f"s_waitcnt vmcnt({pend+1})")
        P(f"v_mfma_f32_16x16x32_bf16 {v(D,4)}, {v(R+8,4)}, {v(SEL,4)}, {v(D,4)}")
        P(f"v_max3_u32 {v(T)}, {v(T)}, {v(R+7)}, {v(R+8)}")
        P(f"v_max3_u32 {v(T)}, {v(T)}, {v(R+9)}, {v(R+10)}")
        P(f"s_waitcnt vmcnt({pend})")
        P(f"v_mfma_f32_16x16x32_bf16 {v(D,4)}, {v(R+12,4)}, {v(SEL,4)}, {v(D,4)}")
        P(f"v_max3_u32 {v(T+1)}, {v(R+11)}, {v(R+12)}, {v(R+13)}")
        P(f"v_max3_u32 {v(T)}, {v(T)}, {v(R+14)}, {v(R+15)}")
        P(f"v_max_u32 {v(T)}, {v(T)}, {v(T+1)}")
        P(f"v_cmp_eq_u32 vcc, -1, {v(T)}")
        P(f"s_cbranch_vccz {ok}")
    def finish(D):
        P(f"v_add_f32 {v(D)}, {v(D)}, {v(D+1)}")
        P(f"v_add_f32 {v(D+2)}, {v(D+2)}, {v(D+3)}")
        P(f"s_mov_b64 exec, {s(M_H1S,2)}")
        P(f"v_cvt_pk_bf16_f32 {v(D)}, {v(D)}, {v(D+2)}")
        P(f"buffer_store_dword {v(D)}, {v(H1S)}, {s(WS,4)}, {s(S_MST)} offen {st}")
        P("s_mov_b64 exec, -1")
    if KN["pace1"] >= 0 and KN["early1"] == 0:
        pass
    else:
        issue(0)
    P(f"v_mov_b32 {v(SEL+3)}, 0x3f80")
    P(f"v_cndmask_b32 {v(SEL+3)}, {v(SEL+3)}, 1.0, {s(M_ODD,2)}")
    for rr in range(4):
        P(f"v_cndmask_b32 {v(SEL+rr)}, 0, {v(SEL+3)}, {s(M_SEL+2*rr,2)}")
    gap()
    if KN["pace1"] >= 0 and KN["early1"] == 0:
        P(f"s_waitcnt vmcnt({KN['pace1']})")
        issue(0)
    if not DB1:
        P.label(lab)
        check(0, DA, 0, lab + "_ok")
        spin(P, lab + "_x")
        issue(0)
        P(f"s_branch {lab}")
        P.label(lab + "_x")
        P(f"s_mov_b32 {s(S_SPIN)}, 0")
        P.label(lab + "_ok")
        finish(DA)
        return 0
    if KN["stag1"]:
        P(f"s_waitcnt vmcnt({KN['stag1']})")
    issue(16)
    P.label(lab)
    check(0, DA, 4, lab + "_ok")
    spin(P, lab + "_x")
    issue(0)
    check(16, DB_, 4, lab + "_okb")
    issue(16)
    P(f"s_branch {lab}")
    P.label(lab + "_okb")
    finish(DB_)
    P(f"s_branch {lab}_e")
    P.label(lab + "_x")
    P(f"s_mov_b32 {s(S_SPIN)}, 0")
    P.label(lab + "_ok")
    finish(DA)
    P.label(lab + "_e")
    return 4

def emit_lb_prefetch(P, w):
    sl = SLOT[("q", LDSQ[0])]
    for t, LB in ((0, LB0), (1, LB1)):
        ad = lds_frag_addr(w, sl, t)
        assert ad + 1024 < 65536
        P(f"ds_read_b128 {v(LB,4)}, {v(P1)} offset:{ad}")
        P(f"ds_read_b128 {v(LB+4,4)}, {v(P1)} offset:{ad+1024}")

def rot_early(P, w):
    for r_ in (S_KX, S_VX): P(f"s_add_u32 {s(r_)}, {s(r_)}, 8192")
    P(f"s_add_u32 {s(S_KM)}, {s(S_KM)}, 131072")
    for r_ in range(S_PS, S_PS + 3):
        P(f"s_add_u32 {s(r_)}, {s(r_)}, {s(S_PDELTA)}")
    P(f"s_sub_u32 {s(S_PPO)}, {s(S_PPO)}, {s(S_PDELTA)}")
    ow = own(w)
    for i, kc in enumerate(ow):
        P(f"s_add_u32 {s(S_MRD+i)}, {s(S_MWR)}, {kc*1024}")
    P(f"s_add_u32 {s(S_STEP)}, {s(S_STEP)}, 1")

def rot_late(P, w):
    for r_ in range(S_PL, S_PL + 4):
        P(f"s_add_u32 {s(r_)}, {s(r_)}, {s(S_PDELTA)}")
    P(f"s_sub_u32 {s(S_PDELTA)}, 0, {s(S_PDELTA)}")
    P(f"s_mov_b32 s42, {s(S_RDB)}")
    P(f"s_mov_b32 {s(S_RDB)}, {s(S_MWR)}")
    P(f"s_mov_b32 {s(S_MWR)}, {s(S_MPB)}")
    P(f"s_mov_b32 {s(S_MPB)}, s42")
    P(f"s_add_u32 {s(S_MPO)}, {s(S_MPB)}, {s(S_H288)}")
    P(f"s_add_u32 {s(S_MST)}, {s(S_MWR)}, {s(S_UOFF)}")

STAMP = False
SOLO = False
SOLO_T = []
def stamp(P, i):
    if STAMP: P(f"s_memtime s[{84+2*i}:{85+2*i}]")

def emit_loop(P, w, st, tag, DBG, nsteps=64, stamps=None):
    lab = f"CH_{tag}{w}"
    P.label(lab)
    stamp(P, 0)
    def gap2():
        if w < 3:
            zero_p(P, KA, 8)
        else:
            zero_p(P, QA, 8); zero_p(P, KA, 8)
            emit_lb_prefetch(P, w)
        rot_late(P, w)
    if SOLO:
        gap2()
        for kc in poll_order(w):
            P(f"ds_write_b128 {v(P1)}, {v(MA+4*kc,4)} offset:{L_M + kc*1024}")
        pend = []
    else:
        pend = emit_poll(P, w, lab + "_p2", gap2)
    stamp(P, 1)
    B, ext, ext_vm = main_region(w, st)
    order = B.schedule()
    vmp = [(set(n.writes), n) for n in ext_vm] if pend else []
    if SOLO and SOLO_T:
        from sched import Node
        o2 = []; ts = list(SOLO_T); k = 2
        for n in order:
            if ts and n.t >= ts[0]:
                m = Node(f"; STAMP {k}"); m.t = n.t; m.prio = 0
                o2.append(m); ts.pop(0); k += 1
            o2.append(n)
        order = o2
    txt, vm, lg = insert_waits(order, vm_pending=vmp, lg_pending=[(set(n.writes), n) for n in ext])
    nb = 0
    for t in txt:
        if t.startswith("; STAMP"):
            stamp(P, int(t.split()[2])); continue
        P(t)
        if t == "s_barrier" and not (SOLO and SOLO_T):
            nb += 1
            stamp(P, 1 + nb)
    if not (SOLO and SOLO_T): stamp(P, 5)
    def gap1():
        emit_lb_prefetch(P, w)
        zero_p(P, QA, 8)
        rot_early(P, w)
    if SOLO:
        gap1()
        for r_ in (S_KX, S_VX): P(f"s_sub_u32 {s(r_)}, {s(r_)}, 8192")
    elif w < 2:
        emit_hop1(P, w, st, lab + "_p1", gap1)
    elif w == 2:
        gap1()
        P(f"s_cmp_lt_u32 {s(S_HEAD)}, 8")
        P(f"s_cbranch_scc0 {lab}_nh")
        emit_hop1(P, w, st, lab + "_p1", lambda: None)
        P.label(lab + "_nh")
    else:
        P(f"v_mov_b32 v0, {s(S_STEP)}\n v_mov_b32 v1, 0")
        P("s_mov_b64 exec, 1")
        if KN["flag"]: P(f"buffer_store_dword v0, v1, {s(DBG,4)}, {s(S_FLAG)} offen sc1")
        P("s_mov_b64 exec, -1")
        rot_early(P, w)
    if KN["pace2"] >= 0 and w < 3:
        P(f"s_waitcnt vmcnt({KN['pace2']})")
    if KN["b0"]:
        P("s_barrier")
    if not (SOLO and len(SOLO_T) >= 5): stamp(P, 6)
    if STAMP:
        P("s_waitcnt lgkmcnt(0)")
        for i in range(7): P(f"v_writelane_b32 v32, s{84+2*i}, {i}")
        P(f"v_writelane_b32 v32, {s(S_SPIN)}, 7")
        P(f"s_lshl_b32 s42, {s(S_HEAD)}, 2\n s_add_u32 s42, s42, {w}\n s_lshl_b32 s42, s42, 6\n s_add_u32 s42, s42, {s(S_STEP)}\n s_sub_u32 s42, s42, 1\n s_lshl_b32 s42, s42, 5\n s_add_u32 s42, s42, {DBGW_OFF}")
        P(f"v_lshrrev_b32 v33, 2, {v(P1)}")
        P("s_mov_b64 exec, 0xff")
        P(f"buffer_store_dword v32, v33, {s(WS,4)}, s42 offen")
        P("s_mov_b64 exec, -1")
    P(f"s_cmp_lt_u32 {s(S_STEP)}, {nsteps}")
    P(f"s_cbranch_scc1 {lab}")
    P("s_branch CH_END")

def zero_p(P, reg, n):
    for i in range(0, n, 2):
        P(f"v_mov_b64 {v(reg+i,2)}, 0")

def emit_chain(P, nsteps=64, force_slow=False):
    DBG = 76
    P(f"s_lshr_b32 {s(S_HEAD)}, s2, 3")
    P(f"v_lshrrev_b32 v1, 6, v0\n v_readfirstlane_b32 {s(S_W)}, v1")
    srd(P, WS, KA_WS, WS_SIZE)
    srd(P, TS, KA_MEM0, 9216)
    srd(P, SRD_Q, KA_WQ, 576 * 8192)
    srd(P, SRD_K, KA_WK, 576 * 8192)
    srd(P, SRD_V, KA_WV, 576 * 8192)
    srd(P, SRD_O, KA_WO, 32 * 147456)
    srd(P, DBG, KA_DBG, 256)
    P("s_memtime s[80:81]")
    P(f"s_mov_b32 {s(S_SPIN)}, {SPIN_BUDGET}")
    lane_consts(P)
    P("s_waitcnt lgkmcnt(0)")
    emit_init_rings(P)
    emit_tables(P)
    emit_weight_fill(P)
    def m64(d, val):
        P(f"s_mov_b32 {s(d)}, 0x{val & 0xffffffff:08x}\n s_mov_b32 {s(d+1)}, 0x{val >> 32:08x}")
    m64(M_HI0, 0x3333333333333333); m64(M_ODD, 0xAAAAAAAAAAAAAAAA); m64(M_H1S, 0x00FF00FF00FF00FF)
    for rr in range(4): m64(M_SEL + 2*rr, ((3 << (2*rr)) | (3 << (8 + 2*rr))) * 0x0001000100010001)
    import struct, math
    cval = struct.unpack("<I", struct.pack("<f", 128 ** -0.5 * math.log2(math.e)))[0]
    P(f"s_mov_b32 {s(S_C)}, 0x{cval:08x}")
    P(f"s_mov_b32 {s(S_STEP)}, 0")
    P(f"s_lshl_b32 s42, {s(S_HEAD)}, 19\n s_lshl_b32 s43, {s(S_W)}, 11\n s_add_u32 s42, s42, s43")
    P(f"s_add_u32 {s(S_KX)}, s42, {K_OFF}")
    P(f"s_add_u32 {s(S_VX)}, s42, {V_OFF}")
    P(f"s_lshl_b32 s42, {s(S_HEAD)}, 12\n s_lshl_b32 s43, {s(S_W)}, 10\n s_add_u32 s42, s42, s43\n s_add_u32 {s(S_KM)}, s42, {KM_OFF}")
    P(f"s_lshl_b32 s42, {s(S_HEAD)}, 1\n s_add_u32 s42, s42, {s(S_W)}\n s_add_u32 s43, {s(S_HEAD)}, 64")
    P(f"s_cmp_lt_u32 {s(S_W)}, 2\n s_cselect_b32 s42, s42, s43\n s_min_u32 s42, s42, 71")
    P(f"s_lshr_b32 s43, s42, 1\n s_lshl_b32 s43, s43, 8\n s_and_b32 s44, s42, 1\n s_lshl_b32 s44, s44, 4\n s_add_u32 {s(S_UOFF)}, s43, s44")
    P("s_lshl_b32 s42, s42, 7")
    for i in range(4): P(f"s_add_u32 {s(S_PL+i)}, s42, {PART_OFF + PART_SLOT + 73728*i}")
    P(f"s_mul_i32 s42, {s(S_HEAD)}, 9216\n s_lshl_b32 s43, {s(S_W)}, 8\n s_add_u32 s42, s42, s43")
    for i in range(3): P(f"s_add_u32 {s(S_PS+i)}, s42, {PART_OFF + 4096*i}")
    P(f"s_mov_b32 {s(S_PDELTA)}, {-PART_SLOT}")
    P(f"s_mov_b32 {s(S_RDB)}, {MR_OFF + 2*MR_SLOT}\n s_mov_b32 {s(S_MWR)}, {MR_OFF}\n s_mov_b32 {s(S_MPB)}, {MR_OFF + MR_SLOT}")
    P(f"s_mul_i32 {s(S_H288)}, {s(S_HEAD)}, 288")
    P(f"s_mul_i32 s42, {s(S_HEAD)}, 9216\n s_mul_i32 s43, {s(S_W)}, 3072\n s_add_u32 s42, s42, s43\n s_add_u32 {s(S_PPO)}, s42, {PART_OFF + PART_SLOT}")
    P(f"s_lshl_b32 s42, {s(S_W)}, 10\n s_add_u32 {s(S_MRD)}, s42, {MR_OFF}\n s_add_u32 {s(S_MRD+1)}, s42, {MR_OFF + 4096}")
    P(f"s_mov_b32 {s(S_MRD+2)}, {MR_OFF + 8192}")
    P(f"s_lshl_b32 {s(S_FLAG)}, {s(S_HEAD)}, 2\n s_add_u32 {s(S_FLAG)}, {s(S_FLAG)}, {DBG_PROG}")
    P(f"s_lshl_b32 s42, {s(S_W)}, 10\n s_add_u32 m0, s42, {L_M}")
    zero_p(P, QA, 8)
    emit_group_barrier(P, DBG, force_slow)
    P("s_memtime s[82:83]")
    P("s_cbranch_scc0 CH_slow")
    for tag in ("f", "s"):
        if tag == "s": P.label("CH_slow")
        for w in range(4):
            P(f"s_cmp_eq_u32 {s(S_W)}, {w}")
            P(f"s_cbranch_scc1 CH_go{tag}{w}")
        P("s_endpgm")
    for tag, st in (("f", ""), ("s", "sc1")):
        for w in range(4):
            P.label(f"CH_go{tag}{w}")
            emit_lb_prefetch(P, w)
            emit_loop(P, w, st, tag, DBG, nsteps)
    P.label("CH_END")
    P("s_waitcnt vmcnt(0) lgkmcnt(0)")
    P("s_barrier")
    P("s_memtime s[74:75]")
    P(f"s_cmp_lg_u32 {s(S_W)}, 0")
    P("s_cbranch_scc1 CH_X")
    P(f"v_mov_b32 v0, {s(S_STEP)}\n v_mov_b32 v1, 0")
    P("s_mov_b64 exec, 1")
    P(f"buffer_store_dword v0, v1, {s(DBG,4)}, {s(S_FLAG)} offen sc1")
    P("s_waitcnt lgkmcnt(0)")
    P(f"s_cmp_lg_u32 {s(S_HEAD)}, 0")
    P("s_cbranch_scc1 CH_X")
    P("s_sub_u32 s82, s82, s80\n s_sub_u32 s74, s74, s80")
    P(f"v_mov_b32 v2, s82\n v_mov_b32 v3, s74\n v_mov_b32 v4, {s(S_SPIN)}")
    P(f"buffer_store_dword v2, v1, {s(DBG,4)}, 0 offen offset:16")
    P(f"buffer_store_dword v3, v1, {s(DBG,4)}, 0 offen offset:20")
    P(f"buffer_store_dword v4, v1, {s(DBG,4)}, 0 offen offset:24")
    P.label("CH_X")
    P("s_endpgm")
```

```python
from asmdsl import *
from layout import *

S_W = 3
WS = 8
BS = 12
XS = 16
OS = 20
P_WQ, P_WK, P_WV, P_W1, P_W2, P_WO = 24, 26, 28, 30, 32, 34
SC1 = "sc1"

def load_ptrs(P):
    P(f"s_load_dwordx2 {s(WS,2)}, s[0:1], {KA_WS}")
    P(f"s_load_dwordx2 {s(XS,2)}, s[0:1], {KA_X}")
    P(f"s_load_dwordx2 {s(OS,2)}, s[0:1], {KA_OUT}")
    for reg, ka in ((P_WQ, KA_WQ), (P_WK, KA_WK), (P_WV, KA_WV), (P_W1, KA_W1), (P_W2, KA_W2), (P_WO, KA_WO)):
        P(f"s_load_dwordx2 {s(reg,2)}, s[0:1], {ka}")
    P(f"s_mov_b32 {s(WS+2)}, {WS_SIZE}\n s_mov_b32 {s(WS+3)}, 0x00020000")
    P(f"s_mov_b32 {s(XS+2)}, {S*DM*2}\n s_mov_b32 {s(XS+3)}, 0x00020000")
    P(f"s_mov_b32 {s(OS+2)}, {S*DM*2}\n s_mov_b32 {s(OS+3)}, 0x00020000")
    P(f"s_mov_b32 {s(BS+3)}, 0x00020000")
    P(f"v_lshrrev_b32 v1, 6, v0\n v_readfirstlane_b32 {s(S_W)}, v1")
    P("s_waitcnt lgkmcnt(0)")

def xreduce(P, reg, tmp, op="add"):
    ins = "v_add_f32" if op == "add" else "v_max_f32"
    P(f"v_mov_b32 {v(tmp)}, {v(reg)}")
    P(f"v_permlane16_swap_b32 {v(reg)}, {v(tmp)}")
    P(f"{ins} {v(reg)}, {v(reg)}, {v(tmp)}")
    P(f"v_mov_b32 {v(tmp)}, {v(reg)}")
    P(f"v_permlane32_swap_b32 {v(reg)}, {v(tmp)}")
    P(f"{ins} {v(reg)}, {v(reg)}, {v(tmp)}")

def emit_ln(P, S_TT, tag="LN"):
    import struct
    inv = struct.unpack("<I", struct.pack("<f", 1.0 / 576))[0]
    eps = struct.unpack("<I", struct.pack("<f", 1e-5))[0]
    P("v_and_b32 v1, 63, v0\n v_and_b32 v2, 15, v1\n v_lshrrev_b32 v3, 4, v1")
    P(f"s_lshl_b32 s40, {s(S_TT)}, 4\n v_add_u32 v4, s40, v2\n v_mul_u32_u24 v4, 1152, v4")
    P(f"v_lshl_add_u32 v4, v3, 4, v4\n s_lshl_b32 s41, {s(S_W)}, 6\n v_add_u32 v4, s41, v4")
    P(f"v_lshlrev_b32 v5, 4, v1")
    P(f"v_lshlrev_b32 v6, 4, v2\n s_lshl_b32 s41, {s(S_W)}, 2\n v_add_u32 v7, s41, v6")
    P(f"s_mul_i32 s42, {s(S_TT)}, 18432\n s_lshl_b32 s41, {s(S_W)}, 10\n s_add_u32 s42, s42, s41\n s_add_u32 s42, s42, {XN_OFF}")
    P(f"s_cmp_ge_u32 {s(S_W)}, 2\n s_cbranch_scc1 {tag}_4")
    for n in (5, 4):
        if n == 4: P.label(f"{tag}_4")
        R = 8; F = 32
        for j in range(n):
            P(f"buffer_load_dwordx4 {v(R+4*j,4)}, v4, {s(XS,4)}, 0 offen offset:{256*j}")
        for j in range(n):
            P(f"s_waitcnt vmcnt({n-1-j})")
            for i in range(4):
                P(f"v_lshlrev_b32 {v(F+8*j+2*i)}, 16, {v(R+4*j+i)}")
                P(f"v_and_b32 {v(F+8*j+2*i+1)}, 0xffff0000, {v(R+4*j+i)}")
        N = 8 * n
        A0, A1, T = 72, 73, 74
        P(f"v_add_f32 {v(A0)}, {v(F)}, {v(F+1)}\n v_add_f32 {v(A1)}, {v(F+2)}, {v(F+3)}")
        for i in range(4, N, 2):
            P(f"v_add_f32 {v(A0)}, {v(A0)}, {v(F+i)}\n v_add_f32 {v(A1)}, {v(A1)}, {v(F+i+1)}")
        P(f"v_add_f32 {v(A0)}, {v(A0)}, {v(A1)}")
        xreduce(P, A0, T)
        P(f"ds_write_b32 v7, {v(A0)}\n s_waitcnt lgkmcnt(0)\n s_barrier")
        P(f"ds_read_b128 v[76:79], v6\n s_waitcnt lgkmcnt(0)")
        P(f"v_add_f32 v76, v76, v77\n v_add_f32 v78, v78, v79\n v_add_f32 v76, v76, v78\n v_mul_f32 v76, 0x{inv:08x}, v76")
        P(f"v_sub_f32 {v(T)}, {v(F)}, v76\n v_mul_f32 {v(A0)}, {v(T)}, {v(T)}\n v_sub_f32 {v(T+1)}, {v(F+1)}, v76\n v_mul_f32 {v(A1)}, {v(T+1)}, {v(T+1)}")
        for i in range(2, N, 2):
            P(f"v_sub_f32 {v(T)}, {v(F+i)}, v76\n v_sub_f32 {v(T+1)}, {v(F+i+1)}, v76")
            P(f"v_fmac_f32 {v(A0)}, {v(T)}, {v(T)}\n v_fmac_f32 {v(A1)}, {v(T+1)}, {v(T+1)}")
        P(f"v_add_f32 {v(A0)}, {v(A0)}, {v(A1)}")
        xreduce(P, A0, T)
        P(f"ds_write_b32 v7, {v(A0)} offset:256\n s_waitcnt lgkmcnt(0)\n s_barrier")
        P(f"ds_read_b128 v[80:83], v6 offset:256\n s_waitcnt lgkmcnt(0)")
        P(f"v_add_f32 v80, v80, v81\n v_add_f32 v82, v82, v83\n v_add_f32 v80, v80, v82\n v_mul_f32 v80, 0x{inv:08x}, v80")
        P("v_cvt_pk_bf16_f32 v77, v76, v80\n v_lshlrev_b32 v76, 16, v77\n v_and_b32 v80, 0xffff0000, v77")
        P(f"v_add_f32 v80, 0x{eps:08x}, v80\n v_cvt_pk_bf16_f32 v80, v80, v80\n v_and_b32 v80, 0xffff0000, v80")
        P("v_sqrt_f32 v80, v80\n v_cvt_pk_bf16_f32 v80, v80, v80\n v_and_b32 v80, 0xffff0000, v80\n v_rcp_f32 v80, v80")
        for j in range(n):
            for i in range(4):
                a_, b_ = F + 8*j + 2*i, F + 8*j + 2*i + 1
                P(f"v_sub_f32 {v(a_)}, {v(a_)}, v76\n v_sub_f32 {v(b_)}, {v(b_)}, v76")
                P(f"v_cvt_pk_bf16_f32 {v(a_)}, {v(a_)}, {v(b_)}")
                P(f"v_and_b32 {v(b_)}, 0xffff0000, {v(a_)}\n v_lshlrev_b32 {v(a_)}, 16, {v(a_)}")
                P(f"v_mul_f32 {v(a_)}, {v(a_)}, v80\n v_mul_f32 {v(b_)}, {v(b_)}, v80")
                P(f"v_cvt_pk_bf16_f32 {v(R+4*j+i)}, {v(a_)}, {v(b_)}")
            P(f"s_add_u32 s41, s42, {4096*j}")
            P(f"buffer_store_dwordx4 {v(R+4*j,4)}, v5, {s(WS,4)}, s41 offen {SC1}")
        P(f"s_branch {tag}_done")
    P.label(f"{tag}_done")

G_XF = (64, 128)
G_WF = (96, 160)
V_XA = 8
V_WA = 10
V_DA, V_DB = 18, 19
V_L16 = V_DA
S_AO = 40
S_BO = 44
S_LA, S_LB = 48, 49
S_BST = 50
S_CNT = 51
S_OUT = 52
S_T = 54

def gemm_lane_setup(P, ncol, pitch_reg):
    P("v_and_b32 v1, 63, v0\n v_lshrrev_b32 v2, 4, v1")
    P(f"v_lshlrev_b32 {v(V_DA)}, 4, v1")
    P(f"s_lshr_b32 {s(S_T)}, {s(S_W)}, 1\n s_lshl_b32 {s(S_T)}, {s(S_T)}, 13")
    P(f"v_add_u32 {v(V_XA)}, {s(S_T)}, {v(V_DA)}")
    P("v_bfe_u32 v3, v1, 2, 2\n v_and_b32 v4, 3, v1\n v_and_b32 v5, 1, v2\n v_lshl_add_u32 v5, v5, 2, v3")
    P("v_lshlrev_b32 v6, 12, v2\n v_lshl_add_u32 v6, v3, 9, v6\n v_lshl_add_u32 v6, v4, 3, v6\n v_add_u32 v6, 16384, v6")
    P(f"s_and_b32 {s(S_T)}, {s(S_W)}, 1\n s_mul_i32 {s(S_T)}, {s(S_T)}, {ncol}")
    for c in range(ncol):
        P(f"s_add_u32 {s(S_T+1)}, {s(S_T)}, {c}")
        P(f"v_xor_b32 v7, {s(S_T+1)}, v5\n v_lshl_add_u32 {v(V_WA+c)}, v7, 5, v6")
    P(f"s_and_b32 {s(S_T)}, {s(S_W)}, 1\n s_lshl_b32 {s(S_T)}, {s(S_T)}, 1\n s_lshr_b32 {s(S_T+1)}, {s(S_W)}, 1\n s_lshl_b32 {s(S_T+1)}, {s(S_T+1)}, 2\n s_or_b32 {s(S_T)}, {s(S_T)}, {s(S_T+1)}")
    P(f"v_lshrrev_b32 v3, 5, v1\n v_or_b32 v4, {s(S_T)}, v3\n v_lshlrev_b32 v4, 1, v4\n v_and_b32 v5, 31, v1\n v_xor_b32 v4, v4, v5")
    P(f"v_mul_lo_u32 v3, v3, {s(pitch_reg)}\n v_lshl_add_u32 {v(V_DB)}, v4, 4, v3")

def gemm_src_setup(P, a_base, a_stride, b_base, pitch_reg, perm):
    P(f"s_mul_i32 {s(S_T)}, {s(S_W)}, {4*a_stride}\n s_add_u32 {s(S_T)}, {s(S_T)}, {s(a_base)}")
    for i in range(4):
        P(f"s_add_u32 {s(S_AO+i)}, {s(S_T)}, {i*a_stride}")
    k2 = 4 if perm else 8
    k1 = 16 if perm else 4
    k3 = 8 if perm else 16
    P(f"s_and_b32 {s(S_T)}, {s(S_W)}, 1\n s_lshl_b32 {s(S_T)}, {s(S_T)}, 1\n s_lshr_b32 {s(S_T+1)}, {s(S_W)}, 1\n s_mul_i32 {s(S_T+1)}, {s(S_T+1)}, {k2}\n s_add_u32 {s(S_T)}, {s(S_T)}, {s(S_T+1)}")
    for i in range(4):
        P(f"s_add_u32 {s(S_T+1)}, {s(S_T)}, {(i&1)*k1 + (i>>1)*k3}\n s_mul_i32 {s(S_T+1)}, {s(S_T+1)}, {s(pitch_reg)}\n s_add_u32 {s(S_BO+i)}, {s(S_T+1)}, {s(b_base)}")
    P(f"s_lshl_b32 {s(S_BST)}, {s(pitch_reg)}, 5")
    P(f"s_lshl_b32 {s(S_LA)}, {s(S_W)}, 12")
    P(f"s_and_b32 {s(S_T)}, {s(S_W)}, 1\n s_lshl_b32 {s(S_T)}, {s(S_T)}, 10\n s_lshr_b32 {s(S_T+1)}, {s(S_W)}, 1\n s_lshl_b32 {s(S_T+1)}, {s(S_T+1)}, 12\n s_add_u32 {s(S_LB)}, {s(S_T)}, {s(S_T+1)}\n s_add_u32 {s(S_LB)}, {s(S_LB)}, 16384")

def dma_groups(ld):
    G = []
    for i in range(4):
        G.append([f"s_add_u32 m0, {s(S_LA)}, {i*1024}",
                  f"buffer_load_dwordx4 {v(V_DA)}, {s(WS,4)}, {s(S_AO+i)} offen {ld} lds",
                  f"s_add_u32 {s(S_AO+i)}, {s(S_AO+i)}, 1024"])
    for i in range(4):
        G.append([f"s_add_u32 m0, {s(S_LB)}, {(i&1)*2048 + (i>>1)*8192}",
                  f"buffer_load_dwordx4 {v(V_DB)}, {s(BS,4)}, {s(S_BO+i)} offen lds",
                  f"s_add_u32 {s(S_BO+i)}, {s(S_BO+i)}, {s(S_BST)}"])
    G[3] += [f"s_add_u32 {s(S_LA)}, {s(S_LA)}, 32768", f"s_and_b32 {s(S_LA)}, {s(S_LA)}, 0x1ffff"]
    G[7] += [f"s_add_u32 {s(S_LB)}, {s(S_LB)}, 32768", f"s_and_b32 {s(S_LB)}, {s(S_LB)}, 0x1ffff"]
    return G

def frag_reads(ncol, st, par):
    R = []
    o = par * 32768
    for c in range(max(8, ncol)):
        if c < ncol:
            for h in range(2):
                R.append(f"ds_read_b64_tr_b16 {v(G_WF[st]+4*c+2*h,2)}, {v(V_WA+c)} offset:{o + h*2048}")
        if c < 8:
            R.append(f"ds_read_b128 {v(G_XF[st]+4*c,4)}, {v(V_XA)} offset:{o + c*1024}")
    return R

def toggles(ncol):
    return [f"v_xor_b32 {v(V_XA)}, 0x10000, {v(V_XA)}"] + [f"v_xor_b32 {v(V_WA+c)}, 0x10000, {v(V_WA+c)}" for c in range(ncol)]

def acc(dt, tt): return (dt * 8 + tt) * 4

def gemm_iter(P, ncol, vmode, st, reads, dmas, wait):
    P(wait); P("s_barrier")
    M = []
    for dt in range(ncol):
        for tt in range(8):
            wf, xf = v(G_WF[st] + 4*dt, 4), v(G_XF[st] + 4*tt, 4)
            A_, B_ = (xf, wf) if vmode else (wf, xf)
            M.append(f"v_mfma_f32_16x16x32_bf16 {a(acc(dt,tt),4)}, {A_}, {B_}, {a(acc(dt,tt),4)}")
    slots = [[] for _ in M]
    nr = len(reads)
    for i, rd in enumerate(reads): slots[min(i, len(M) - 1)].append(rd)
    if dmas:
        first = 2
        step = max(1, (len(M) - 8) // len(dmas))
        for i, g in enumerate(dmas): slots[min(first + i * step, len(M) - 1)] += g
    for m, f in zip(M, slots):
        P(m)
        for x in f: P(x)

def emit_gemm_main(P, ncol, vmode, nk, tag, ld=SC1):
    G = dma_groups(ld)
    for st in range(4):
        for g in G:
            for x in g: P(x)
    for i in range(ncol * 32):
        P(f"v_accvgpr_write_b32 {a(i)}, 0")
    P("s_waitcnt vmcnt(24)\n s_barrier")
    for rd in frag_reads(ncol, 0, 0): P(rd)
    P(f"s_mov_b32 {s(S_CNT)}, {(nk - 4)//2}")
    P.label(f"{tag}_loop")
    gemm_iter(P, ncol, vmode, 0, frag_reads(ncol, 1, 1), G, "s_waitcnt vmcnt(16) lgkmcnt(0)")
    for t in toggles(ncol): P(t)
    gemm_iter(P, ncol, vmode, 1, frag_reads(ncol, 0, 0), G, "s_waitcnt vmcnt(16) lgkmcnt(0)")
    P(f"s_sub_u32 {s(S_CNT)}, {s(S_CNT)}, 1\n s_cmp_lg_u32 {s(S_CNT)}, 0\n s_cbranch_scc1 {tag}_loop")
    gemm_iter(P, ncol, vmode, 0, frag_reads(ncol, 1, 1), None, "s_waitcnt vmcnt(16) lgkmcnt(0)")
    for t in toggles(ncol): P(t)
    gemm_iter(P, ncol, vmode, 1, frag_reads(ncol, 0, 0), None, "s_waitcnt vmcnt(8) lgkmcnt(0)")
    gemm_iter(P, ncol, vmode, 0, frag_reads(ncol, 1, 1), None, "s_waitcnt vmcnt(0) lgkmcnt(0)")
    gemm_iter(P, ncol, vmode, 1, [], None, "s_waitcnt lgkmcnt(0)")
    if ((nk // 2 - 1) & 1):
        for t in toggles(ncol): P(t)

def cvt_quad(P, dst, a0):
    for i in range(4): P(f"v_accvgpr_read_b32 {v(dst+8+i)}, {a(a0+i)}")
    P(f"v_cvt_pk_bf16_f32 {v(dst)}, {v(dst+8)}, {v(dst+9)}")
    P(f"v_cvt_pk_bf16_f32 {v(dst+1)}, {v(dst+10)}, {v(dst+11)}")

def emit_epi_kq(P, kind):
    n = 0
    for tt in range(8):
        for w4 in range(4):
            T = 64 + 16 * (n & 3); n += 1
            lo, hi = (T, T + 2)
            if kind == "k" and (tt & 1): lo, hi = hi, lo
            qa = [acc(2*w4, tt), acc(2*w4+1, tt)]
            for dst, a0 in ((lo, qa[0]), (hi, qa[1])):
                for i in range(4): P(f"v_accvgpr_read_b32 {v(T+4+i)}, {a(a0+i)}")
                P(f"v_cvt_pk_bf16_f32 {v(dst)}, {v(T+4)}, {v(T+5)}")
                P(f"v_cvt_pk_bf16_f32 {v(dst+1)}, {v(T+6)}, {v(T+7)}")
            if kind == "h":
                for i in range(4): P(f"v_pk_max_i16 {v(T+i)}, {v(T+i)}, 0")
                off = tt * 147456 + w4 * 1024
            else:
                off = (tt >> 1) * 8192 + w4 * 2048 + (tt & 1) * 1024
            P(f"s_add_u32 {s(S_T)}, {s(S_OUT)}, {off}")
            P(f"buffer_store_dwordx4 {v(T,4)}, {v(V_L16)}, {s(WS,4)}, {s(S_T)} offen {SC1}")

def emit_epi_v(P):
    n = 0
    for j in range(4):
        for w4 in range(4):
            for uw in range(2):
                T = 64 + 16 * (n & 3); n += 1
                qa = [acc(2*w4 + uw, 2*j), acc(2*w4 + 1 - uw, 2*j + 1)]
                for dst, a0 in ((T, qa[0]), (T + 2, qa[1])):
                    for i in range(4): P(f"v_accvgpr_read_b32 {v(T+4+i)}, {a(a0+i)}")
                    P(f"v_cvt_pk_bf16_f32 {v(dst)}, {v(T+4)}, {v(T+5)}")
                    P(f"v_cvt_pk_bf16_f32 {v(dst+1)}, {v(T+6)}, {v(T+7)}")
                P(f"s_add_u32 {s(S_T)}, {s(S_OUT)}, {j*8192 + w4*2048 + uw*1024}")
                P(f"buffer_store_dwordx4 {v(T,4)}, {v(V_L16)}, {s(WS,4)}, {s(S_T)} offen {SC1}")

def emit_epi_f2(P):
    for tt in range(8):
        for ct in range(6):
            P(f"s_add_u32 {s(S_T)}, {s(S_OUT)}, {tt*36864 + ct*1024}")
            P(f"buffer_store_dwordx4 {a(acc(ct,tt),4)}, {v(V_L16)}, {s(WS,4)}, {s(S_T)} offen {SC1}")

S_RB, S_CB, S_KS, S_PITCH, S_ABASE, S_BBASE = 60, 61, 62, 63, 64, 65

def emit_tile(P, kind, tag):
    ptr, pitch, nrec = {"k": (P_WK, 8192, 576*8192), "v": (P_WV, 8192, 576*8192), "q": (P_WQ, 8192, 576*8192),
                        "h": (P_W1, 9216, 576*9216), "f": (P_W2, 1152, 4608*1152)}[kind]
    P(f"s_mov_b64 {s(BS,2)}, {s(ptr,2)}\n s_mov_b32 {s(BS+2)}, {nrec}\n s_mov_b32 {s(S_PITCH)}, {pitch}")
    ncol = 6 if kind == "f" else 8
    gemm_lane_setup(P, ncol, S_PITCH)
    if kind == "f":
        P(f"s_mul_i32 {s(S_ABASE)}, {s(S_RB)}, {16*147456}\n s_mul_i32 {s(S_T)}, {s(S_KS)}, {24*1024}\n s_add_u32 {s(S_ABASE)}, {s(S_ABASE)}, {s(S_T)}\n s_add_u32 {s(S_ABASE)}, {s(S_ABASE)}, {H_OFF}")
        P(f"s_mul_i32 {s(S_BBASE)}, {s(S_KS)}, {768*1152}\n s_mul_i32 {s(S_T)}, {s(S_CB)}, 384\n s_add_u32 {s(S_BBASE)}, {s(S_BBASE)}, {s(S_T)}")
        gemm_src_setup(P, S_ABASE, 147456, S_BBASE, S_PITCH, True)
        emit_gemm_main(P, 6, False, 24, tag)
        P(f"s_mul_i32 {s(S_OUT)}, {s(S_KS)}, {S*DM*4}\n s_lshl_b32 {s(S_T)}, {s(S_RB)}, 1\n s_lshr_b32 {s(S_T+1)}, {s(S_W)}, 1\n s_add_u32 {s(S_T)}, {s(S_T)}, {s(S_T+1)}\n s_mul_i32 {s(S_T)}, {s(S_T)}, {8*36864}\n s_add_u32 {s(S_OUT)}, {s(S_OUT)}, {s(S_T)}")
        P(f"s_lshl_b32 {s(S_T)}, {s(S_CB)}, 1\n s_and_b32 {s(S_T+1)}, {s(S_W)}, 1\n s_add_u32 {s(S_T)}, {s(S_T)}, {s(S_T+1)}\n s_mul_i32 {s(S_T)}, {s(S_T)}, 6144\n s_add_u32 {s(S_OUT)}, {s(S_OUT)}, {s(S_T)}\n s_add_u32 {s(S_OUT)}, {s(S_OUT)}, {F2_OFF}")
        emit_epi_f2(P)
        return
    P(f"s_mul_i32 {s(S_ABASE)}, {s(S_RB)}, {16*18432}\n s_add_u32 {s(S_ABASE)}, {s(S_ABASE)}, {XN_OFF}")
    P(f"s_lshl_b32 {s(S_BBASE)}, {s(S_CB)}, 9")
    gemm_src_setup(P, S_ABASE, 18432, S_BBASE, S_PITCH, False)
    emit_gemm_main(P, 8, kind == "v", 18, tag)
    if kind == "h":
        P(f"s_lshl_b32 {s(S_T)}, {s(S_RB)}, 1\n s_lshr_b32 {s(S_T+1)}, {s(S_W)}, 1\n s_add_u32 {s(S_T)}, {s(S_T)}, {s(S_T+1)}\n s_mul_i32 {s(S_OUT)}, {s(S_T)}, {8*147456}")
        P(f"s_lshl_b32 {s(S_T)}, {s(S_CB)}, 1\n s_and_b32 {s(S_T+1)}, {s(S_W)}, 1\n s_add_u32 {s(S_T)}, {s(S_T)}, {s(S_T+1)}\n s_lshl_b32 {s(S_T)}, {s(S_T)}, 12\n s_add_u32 {s(S_OUT)}, {s(S_OUT)}, {s(S_T)}\n s_add_u32 {s(S_OUT)}, {s(S_OUT)}, {H_OFF}")
        emit_epi_kq(P, "h")
    else:
        base = {"k": K_OFF, "v": V_OFF, "q": Q_OFF}[kind]
        P(f"s_lshl_b32 {s(S_T)}, {s(S_CB)}, 1\n s_and_b32 {s(S_T+1)}, {s(S_W)}, 1\n s_add_u32 {s(S_T)}, {s(S_T)}, {s(S_T+1)}\n s_lshl_b32 {s(S_OUT)}, {s(S_T)}, 19")
        P(f"s_lshl_b32 {s(S_T)}, {s(S_RB)}, 1\n s_lshr_b32 {s(S_T+1)}, {s(S_W)}, 1\n s_add_u32 {s(S_T)}, {s(S_T)}, {s(S_T+1)}\n s_lshl_b32 {s(S_T)}, {s(S_T)}, 15\n s_add_u32 {s(S_OUT)}, {s(S_OUT)}, {s(S_T)}\n s_add_u32 {s(S_OUT)}, {s(S_OUT)}, {base}")
        if kind == "v": emit_epi_v(P)
        else: emit_epi_kq(P, kind)

T_WO = 0
TQ, TK, TV = 16, 48, 80
TKM, TVM = 112, 128
TSX = 144
TSM = 156
TP_ = 164
TO = 16
TOB = 176
TACC = 16
V_TL16, V_TKM, V_TVA, V_TVB = 8, 9, 10, 11
S_SEG, S_HG, S_CQ = 60, 61, 62
M_DIAG = 64
M_GLO = 72
S_TC = 74
S_TB = 75

def emit_tail_setup(P, kmf):
    import struct, math
    P("v_and_b32 v1, 63, v0\n v_lshrrev_b32 v2, 4, v1\n v_and_b32 v3, 15, v1")
    P(f"v_lshlrev_b32 {v(V_TL16)}, 4, v1")
    global KM2_OFF
    if kmf == "old":
        KM2_OFF = 128
        P(f"v_and_b32 v4, 7, v3\n v_lshl_add_u32 v4, v2, 4, v4\n v_lshlrev_b32 {v(V_TKM)}, 4, v4")
    else:
        KM2_OFF = 32
        P(f"v_and_b32 v4, 6, v3\n v_lshlrev_b32 v4, 1, v4\n v_and_b32 v5, 1, v3\n v_add_u32 v4, v4, v5\n v_lshl_add_u32 v4, v2, 4, v4\n v_lshlrev_b32 {v(V_TKM)}, 4, v4")
    P("v_and_b32 v4, 1, v2")
    if kmf == "old":
        P(f"v_lshl_add_u32 v5, v4, 4, v3\n v_lshlrev_b32 v5, 4, v5\n v_add_u32 {v(V_TVA)}, 8, v5\n v_add_u32 {v(V_TVB)}, 520, v5")
    else:
        P(f"v_lshl_add_u32 v5, v4, 5, v3\n v_lshlrev_b32 v5, 4, v5\n v_add_u32 {v(V_TVA)}, 8, v5\n v_add_u32 {v(V_TVB)}, 264, v5")
    for i in range(4):
        P(f"v_lshl_add_u32 v4, v2, 2, {i}\n v_cmp_le_u32 {s(M_DIAG+2*i,2)}, v4, v3")
    P(f"v_cmp_gt_u32 {s(M_GLO,2)}, 2, v2")
    cval = struct.unpack("<I", struct.pack("<f", 128 ** -0.5 * math.log2(math.e)))[0]
    P(f"s_mov_b32 {s(S_TC)}, 0x{cval:08x}")
    P(f"s_mov_b64 {s(BS,2)}, {s(P_WO,2)}\n s_mov_b32 {s(BS+2)}, {32*147456}")
    P("v_lshrrev_b32 v4, 5, v1\n v_and_b32 v5, 31, v1\n v_mul_u32_u24 v6, 1152, v4")
    for jj in range(4):
        f = ((jj & 1) << 1) | ((jj >> 1) << 2)
        P(f"v_or_b32 v7, {f}, v4\n v_lshlrev_b32 v7, 1, v7\n v_xor_b32 v7, v7, v5\n v_lshl_add_u32 {v(12+jj)}, v7, 4, v6")
    P("v_bfe_u32 v4, v1, 2, 2\n v_and_b32 v5, 3, v1\n v_and_b32 v6, 1, v2\n v_lshl_add_u32 v6, v6, 2, v4")
    P(f"v_lshlrev_b32 v7, 12, v2\n v_lshl_add_u32 v7, v4, 9, v7\n v_lshl_add_u32 v7, v5, 3, v7\n s_lshl_b32 {s(S_TB)}, {s(S_W)}, 15\n v_add_u32 v7, {s(S_TB)}, v7")
    for c in range(9):
        P(f"v_xor_b32 v4, {c}, v6\n v_lshl_add_u32 {v(20+c)}, v4, 5, v7")
    P(f"s_lshl_b32 {s(S_TB+1)}, {s(S_HG)}, 2\n s_add_u32 {s(S_TB+1)}, {s(S_TB+1)}, {s(S_W)}\n s_mul_i32 {s(S_TB+1)}, {s(S_TB+1)}, 147456\n s_mul_i32 {s(S_TB+2)}, {s(S_CQ)}, 288\n s_add_u32 {s(S_TB+1)}, {s(S_TB+1)}, {s(S_TB+2)}")
    def dma(ks):
        for j in range(16):
            j0, j1, j2, j3 = j & 1, (j >> 1) & 1, (j >> 2) & 1, j >> 3
            k = 2*j0 + 4*j2 + 8*j3 + 16*j1
            P(f"s_add_u32 m0, {s(S_TB)}, {(ks&1)*16384 + j*1024}\n s_add_u32 {s(S_TB+2)}, {s(S_TB+1)}, {(32*ks + k)*1152}")
            P(f"buffer_load_dwordx4 {v(12 + j0 + 2*j2)}, {s(BS,4)}, {s(S_TB+2)} offen lds")
    dma(0); dma(1)
    for ks in range(4):
        P(f"s_waitcnt vmcnt({16 if ks < 3 else 0})")
        for c in range(9):
            for h in range(2):
                P(f"ds_read_b64_tr_b16 {a(T_WO + (c*4+ks)*4 + 2*h, 2)}, {v(20+c)} offset:{(ks&1)*16384 + h*2048}")
        P("s_waitcnt lgkmcnt(0)")
        if ks + 2 < 4: dma(ks + 2)

def emit_tail_loads(P):
    P(f"s_lshl_b32 {s(S_TB)}, {s(S_HG)}, 2\n s_add_u32 {s(S_TB)}, {s(S_TB)}, {s(S_W)}\n s_lshl_b32 {s(S_TB)}, {s(S_TB)}, 19\n s_lshl_b32 {s(S_TB+1)}, {s(S_SEG)}, 13\n s_add_u32 {s(S_TB)}, {s(S_TB)}, {s(S_TB+1)}")
    P(f"s_add_u32 {s(S_TB+1)}, {s(S_TB)}, {Q_OFF}\n s_add_u32 {s(S_TB+2)}, {s(S_TB)}, {K_OFF}\n s_add_u32 {s(S_TB+3)}, {s(S_TB)}, {V_OFF}")
    for half in range(2):
        if half:
            for i in (1, 2, 3): P(f"s_add_u32 {s(S_TB+i)}, {s(S_TB+i)}, 4096")
        for w2 in range(2):
            w4 = 2*half + w2
            for t in range(2):
                o = w2*2048 + t*1024
                P(f"buffer_load_dwordx4 {v(TQ + (w4*2+t)*4, 4)}, {v(V_TL16)}, {s(WS,4)}, {s(S_TB+1)} offen offset:{o} {SC1}")
                if t == 0:
                    P(f"buffer_load_dwordx4 {v(TK + (w4*2)*4, 4)}, {v(V_TL16)}, {s(WS,4)}, {s(S_TB+2)} offen offset:{o} {SC1}")
                else:
                    P(f"buffer_load_dwordx2 {v(TK + (w4*2+1)*4 + 2, 2)}, {v(V_TL16)}, {s(WS,4)}, {s(S_TB+2)} offen offset:{o} {SC1}")
                    P(f"buffer_load_dwordx2 {v(TK + (w4*2+1)*4, 2)}, {v(V_TL16)}, {s(WS,4)}, {s(S_TB+2)} offen offset:{o+8} {SC1}")
                P(f"buffer_load_dwordx2 {v(TV + (2*w4+t)*4, 2)}, {v(V_TL16)}, {s(WS,4)}, {s(S_TB+3)} offen offset:{o} {SC1}")
                P(f"buffer_load_dwordx2 {v(TV + (2*w4+1-t)*4 + 2, 2)}, {v(V_TL16)}, {s(WS,4)}, {s(S_TB+3)} offen offset:{o+8} {SC1}")

def emit_tail_sx(P):
    P("s_waitcnt vmcnt(0)")
    for n, (kt, qt) in enumerate(((0, 0), (0, 1), (1, 1))):
        for w4 in range(4):
            c = "0" if w4 == 0 else v(TSX + 4*n, 4)
            P(f"v_mfma_f32_16x16x32_bf16 {v(TSX+4*n,4)}, {v(TK+(w4*2+kt)*4,4)}, {v(TQ+(w4*2+qt)*4,4)}, {c}")

def emit_tail_km_loads(P):
    P(f"s_lshl_b32 {s(S_TB)}, {s(S_SEG)}, 17\n s_lshl_b32 {s(S_TB+1)}, {s(S_HG)}, 14\n s_add_u32 {s(S_TB)}, {s(S_TB)}, {s(S_TB+1)}\n s_lshl_b32 {s(S_TB+1)}, {s(S_W)}, 12\n s_add_u32 {s(S_TB)}, {s(S_TB)}, {s(S_TB+1)}\n s_add_u32 {s(S_TB)}, {s(S_TB)}, {KM_OFF}")
    X = 180
    for w4 in range(4):
        P(f"buffer_load_dwordx2 {v(TKM+4*w4,2)}, {v(V_TKM)}, {s(WS,4)}, {s(S_TB)} offen offset:{w4*1024} {SC1}")
        P(f"buffer_load_dwordx2 {v(TKM+4*w4+2,2)}, {v(V_TKM)}, {s(WS,4)}, {s(S_TB)} offen offset:{w4*1024+KM2_OFF} {SC1}")
    for w4 in range(4):
        P(f"buffer_load_dwordx2 {v(X+4*w4,2)}, {v(V_TVA)}, {s(WS,4)}, {s(S_TB)} offen offset:{w4*1024} {SC1}")
        P(f"buffer_load_dwordx2 {v(X+4*w4+2,2)}, {v(V_TVB)}, {s(WS,4)}, {s(S_TB)} offen offset:{w4*1024} {SC1}")
    return X

def emit_tail_rest(P, X):
    NEG = 0xf149f2ca
    P("s_waitcnt vmcnt(8)")
    for qt in range(2):
        for w4 in range(4):
            c = "0" if w4 == 0 else v(TSM + 4*qt, 4)
            P(f"v_mfma_f32_16x16x32_bf16 {v(TSM+4*qt,4)}, {v(TKM+4*w4,4)}, {v(TQ+(w4*2+qt)*4,4)}, {c}")
    P("s_waitcnt vmcnt(0)")
    P(f"v_mov_b32 v4, 0xffff")
    for w4 in range(4):
        a2, a3, b2, b3 = X+4*w4, X+4*w4+1, X+4*w4+2, X+4*w4+3
        P(f"v_bfi_b32 {v(TVM+4*w4)}, v4, {v(a2)}, {v(a3)}\n v_bfi_b32 {v(TVM+4*w4+1)}, v4, {v(b2)}, {v(b3)}")
        P(f"v_bfi_b32 {v(TVM+4*w4+2)}, v4, {v(a3)}, {v(a2)}\n v_bfi_b32 {v(TVM+4*w4+3)}, v4, {v(b3)}, {v(b2)}")
    P(f"v_mov_b32 v5, 0x{NEG:08x}")
    for i in range(4):
        P(f"v_cndmask_b32 {v(TSX+i)}, v5, {v(TSX+i)}, {s(M_DIAG+2*i,2)}")
        P(f"v_cndmask_b32 {v(TSX+8+i)}, v5, {v(TSX+8+i)}, {s(M_DIAG+2*i,2)}")
    for qt in range(2):
        for i in range(4):
            P(f"v_cndmask_b32 {v(TSM+4*qt+i)}, v5, {v(TSM+4*qt+i)}, {s(M_GLO,2)}")
    for qt in range(2):
        vals = [TSM+4*qt+i for i in range(4)] + ([TSX+i for i in range(4)] if qt == 0 else [TSX+4+i for i in range(8)])
        M, T = 6, 7
        P(f"v_max3_f32 {v(M)}, {v(vals[0])}, {v(vals[1])}, {v(vals[2])}")
        rest = vals[3:]
        while rest:
            if len(rest) >= 2:
                P(f"v_max3_f32 {v(M)}, {v(M)}, {v(rest[0])}, {v(rest[1])}"); rest = rest[2:]
            else:
                P(f"v_max_f32 {v(M)}, {v(M)}, {v(rest[0])}"); rest = []
        xreduce(P, M, T, "max")
        P(f"v_mul_f32 {v(M)}, {s(S_TC)}, {v(M)}")
        for r_ in vals: P(f"v_fma_f32 {v(r_)}, {v(r_)}, {s(S_TC)}, -{v(M)}")
        for r_ in vals: P(f"v_exp_f32 {v(r_)}, {v(r_)}")
        P(f"v_add_f32 {v(M)}, {v(vals[0])}, {v(vals[1])}")
        for r_ in vals[2:]: P(f"v_add_f32 {v(M)}, {v(M)}, {v(r_)}")
        xreduce(P, M, T, "add")
        P(f"v_rcp_f32 {v(M)}, {v(M)}")
        for r_ in vals: P(f"v_mul_f32 {v(r_)}, {v(r_)}, {v(M)}")
        px = TP_ + 4*qt; pm = TP_ + 8 + 2*qt
        P(f"v_cvt_pk_bf16_f32 {v(pm)}, {v(vals[0])}, {v(vals[1])}\n v_cvt_pk_bf16_f32 {v(pm+1)}, {v(vals[2])}, {v(vals[3])}")
        P(f"v_cvt_pk_bf16_f32 {v(px)}, {v(vals[4])}, {v(vals[5])}\n v_cvt_pk_bf16_f32 {v(px+1)}, {v(vals[6])}, {v(vals[7])}")
        if qt == 0:
            P(f"v_mov_b32 {v(px+2)}, 0\n v_mov_b32 {v(px+3)}, 0")
        else:
            P(f"v_cvt_pk_bf16_f32 {v(px+2)}, {v(vals[8])}, {v(vals[9])}\n v_cvt_pk_bf16_f32 {v(px+3)}, {v(vals[10])}, {v(vals[11])}")
    for qt in range(2):
        for dt in range(8):
            d = TO + (dt*2 + qt)*4
            P(f"v_mfma_f32_16x16x32_bf16 {v(d,4)}, {v(TV+4*dt,4)}, {v(TP_+4*qt,4)}, 0")
    for qt in range(2):
        for dt in range(8):
            d = TO + (dt*2 + qt)*4
            P(f"v_mfma_f32_16x16x16_bf16 {v(d,4)}, {v(TVM+2*dt,2)}, {v(TP_+8+2*qt,2)}, {v(d,4)}")
    for qt in range(2):
        for dt in range(8):
            d = TO + (dt*2 + qt)*4
            o = TOB + ((dt >> 1)*2 + qt)*4 + 2*(dt & 1)
            P(f"v_cvt_pk_bf16_f32 {v(o)}, {v(d)}, {v(d+1)}\n v_cvt_pk_bf16_f32 {v(o+1)}, {v(d+2)}, {v(d+3)}")
    for qt in range(2):
        for ks in range(4):
            for ct in range(9):
                d = TACC + (qt*9 + ct)*4
                c = "0" if ks == 0 else v(d, 4)
                P(f"v_mfma_f32_16x16x32_bf16 {v(d,4)}, {a(T_WO+(ct*4+ks)*4,4)}, {v(TOB+(ks*2+qt)*4,4)}, {c}")
    P(f"s_mul_i32 {s(S_TB)}, {s(S_W)}, 18432\n v_add_u32 v4, {s(S_TB)}, {v(V_TL16)}")
    P("s_barrier")
    for u in range(18):
        P(f"ds_write_b128 v4, {v(TACC+4*u,4)} offset:{u*1024}")
    P("s_waitcnt lgkmcnt(0)\n s_barrier")
    P(f"s_lshl_b32 {s(S_TB)}, {s(S_W)}, 10\n v_add_u32 v4, {s(S_TB)}, {v(V_TL16)}\n v_add_u32 v5, 36864, v4")
    P(f"s_lshl_b32 {s(S_TB)}, {s(S_SEG)}, 3\n s_add_u32 {s(S_TB)}, {s(S_TB)}, {s(S_HG)}\n s_mul_i32 {s(S_TB)}, {s(S_TB)}, 73728\n s_mul_i32 {s(S_TB+1)}, {s(S_CQ)}, 9216\n s_add_u32 {s(S_TB)}, {s(S_TB)}, {s(S_TB+1)}\n s_add_u32 {s(S_TB)}, {s(S_TB)}, {TP_OFF}")
    lab = P.newlabel("TL_R")
    for r_ in range(5):
        if r_ == 4:
            P(f"s_cmp_ge_u32 {s(S_W)}, 2\n s_cbranch_scc1 {lab}")
        R = 96 + 16*(r_ & 1)
        o = r_*4096
        P(f"ds_read_b128 {v(R,4)}, v4 offset:{o}\n ds_read_b128 {v(R+4,4)}, v4 offset:{o+18432}")
        P(f"ds_read_b128 {v(R+8,4)}, v5 offset:{o}\n ds_read_b128 {v(R+12,4)}, v5 offset:{o+18432}")
        P(f"s_add_u32 {s(S_TB+1)}, {s(S_W)}, {4*r_}\n s_cmp_ge_u32 {s(S_TB+1)}, 9\n s_cselect_b32 {s(S_TB+2)}, 27648, 0\n s_lshl_b32 {s(S_TB+1)}, {s(S_TB+1)}, 10\n s_add_u32 {s(S_TB+1)}, {s(S_TB+1)}, {s(S_TB+2)}\n s_add_u32 {s(S_TB+1)}, {s(S_TB+1)}, {s(S_TB)}")
        P("s_waitcnt lgkmcnt(0)")
        for i in range(4):
            P(f"v_add_f32 {v(R+i)}, {v(R+i)}, {v(R+4+i)}\n v_add_f32 {v(R+8+i)}, {v(R+8+i)}, {v(R+12+i)}")
        for i in range(4):
            P(f"v_add_f32 {v(R+i)}, {v(R+i)}, {v(R+8+i)}")
        P(f"buffer_store_dwordx4 {v(R,4)}, {v(V_TL16)}, {s(WS,4)}, {s(S_TB+1)} offen {SC1}")
    P.label(lab)

S_U = 63
def emit_final(P):
    P("v_and_b32 v1, 63, v0\n v_lshrrev_b32 v2, 4, v1\n v_and_b32 v3, 15, v1\n v_lshlrev_b32 v4, 4, v1")
    P(f"s_mul_i32 {s(S_TB)}, {s(S_SEG)}, {8*73728}\n s_lshl_b32 {s(S_TB+1)}, {s(S_U)}, 10\n s_add_u32 {s(S_TB)}, {s(S_TB)}, {s(S_TB+1)}\n s_add_u32 {s(S_TB)}, {s(S_TB)}, {TP_OFF}")
    for hg in range(8):
        P(f"buffer_load_dwordx4 {v(16+4*hg,4)}, v4, {s(WS,4)}, {s(S_TB)} offen {SC1}")
        if hg < 7: P(f"s_add_u32 {s(S_TB)}, {s(S_TB)}, 73728")
    P(f"s_mul_i32 {s(S_TB)}, {s(S_SEG)}, 73728\n s_add_u32 {s(S_TB)}, {s(S_TB)}, {s(S_TB+1)}\n s_add_u32 {s(S_TB)}, {s(S_TB)}, {F2_OFF}")
    for ks in range(6):
        P(f"buffer_load_dwordx4 {v(48+4*ks,4)}, v4, {s(WS,4)}, {s(S_TB)} offen {SC1}")
        if ks < 5: P(f"s_add_u32 {s(S_TB)}, {s(S_TB)}, {S*DM*4}")
    P(f"s_cmp_ge_u32 {s(S_U)}, 36\n s_cselect_b32 {s(S_TB+1)}, 16, 0\n s_cselect_b32 {s(S_TB+2)}, 36, 0\n s_sub_u32 {s(S_TB+2)}, {s(S_U)}, {s(S_TB+2)}")
    P(f"s_lshl_b32 {s(S_TB)}, {s(S_SEG)}, 5\n s_add_u32 {s(S_TB)}, {s(S_TB)}, {s(S_TB+1)}\n s_mul_i32 {s(S_TB)}, {s(S_TB)}, 1152\n s_lshl_b32 {s(S_TB+2)}, {s(S_TB+2)}, 5\n s_add_u32 {s(S_TB)}, {s(S_TB)}, {s(S_TB+2)}")
    P(f"v_mul_u32_u24 v5, 1152, v3\n v_lshl_add_u32 v5, v2, 3, v5")
    P(f"buffer_load_dwordx2 v[6:7], v5, {s(XS,4)}, {s(S_TB)} offen")
    P("s_waitcnt vmcnt(7)")
    for hg in range(1, 8):
        pass
    def tree(base, n):
        regs = [base + 4*i for i in range(n)]
        while len(regs) > 1:
            nxt = []
            for k in range(0, len(regs) - 1, 2):
                for i in range(4): P(f"v_add_f32 {v(regs[k]+i)}, {v(regs[k]+i)}, {v(regs[k+1]+i)}")
                nxt.append(regs[k])
            if len(regs) & 1: nxt.append(regs[-1])
            regs = nxt
    tree(16, 8)
    P("s_waitcnt vmcnt(0)")
    tree(48, 6)
    P("v_cvt_pk_bf16_f32 v16, v16, v17\n v_cvt_pk_bf16_f32 v17, v18, v19")
    P("v_cvt_pk_bf16_f32 v48, v48, v49\n v_cvt_pk_bf16_f32 v49, v50, v51")
    for j in range(2):
        P(f"v_lshlrev_b32 v8, 16, v{6+j}\n v_and_b32 v9, 0xffff0000, v{6+j}")
        P(f"v_lshlrev_b32 v10, 16, v{16+j}\n v_and_b32 v11, 0xffff0000, v{16+j}")
        P("v_add_f32 v8, v8, v10\n v_add_f32 v9, v9, v11\n v_cvt_pk_bf16_f32 v8, v8, v9")
        P("v_and_b32 v9, 0xffff0000, v8\n v_lshlrev_b32 v8, 16, v8")
        P(f"v_lshlrev_b32 v10, 16, v{48+j}\n v_and_b32 v11, 0xffff0000, v{48+j}")
        P(f"v_add_f32 v8, v8, v10\n v_add_f32 v9, v9, v11\n v_cvt_pk_bf16_f32 v{12+j}, v8, v9")
    P(f"buffer_store_dwordx2 v[12:13], v5, {s(OS,4)}, {s(S_TB)} offen")
```

```python
from asmdsl import Ins, need

LAT_DS = 52
LAT_DSW = 40
LAT_VM = 220
LAT_BAR = 12

def unit_occ(i):
    op = i.op
    if i.kind == "ds":
        if op.startswith("ds_read_b128"): return ("lds", 16)
        if op.startswith("ds_read_b64"): return ("lds", 9)
        if op.startswith("ds_read_u16"): return ("lds", 32)
        if op.startswith("ds_read"): return ("lds", 9)
        if op.startswith("ds_write_b128"): return ("lds", 52)
        if op.startswith("ds_write_b64"): return ("lds", 32)
        return ("lds", 16)
    if i.kind == "vmem":
        return ("ta", 62 if ("x4" in op or "x2" in op or "x3" in op) else 30)
    return (None, 0)

def issue_cost(i):
    if i.kind == "mfma":
        if i.op.startswith("v_smfmac"): return 12
        if "16x16x32" in i.op: return 8
        return 4
    if "trans" in i.flags or "permlane" in i.flags: return 8
    if i.op == "s_nop": return 4 * i.ws()
    if i.kind == "salu": return 1
    if i.kind in ("label", "dir"): return 0
    return 4

class Node:
    __slots__ = ("ins", "reads", "writes", "succ", "pred", "prio", "idx", "wait_done", "t", "cost", "is_mfma", "npred",
                 "ready", "bias", "lbias", "name", "after", "minready", "ext_only", "unit", "occ", "is_pk", "tdone")
    def __init__(self, texts, rd=(), wr=(), wait_done=(), bias=0, name=None):
        if isinstance(texts, str):
            texts = [x.strip() for x in texts.split("\n") if x.strip()]
        self.ins = [Ins(t) for t in texts]
        self.reads = set(); self.writes = set()
        for i in self.ins:
            if i.kind in ("label", "dir"): continue
            self.reads |= (i.reads - self.writes)
            self.writes |= i.writes
        for t in rd: self.reads.add(("tag", t))
        for t in wr: self.writes.add(("tag", t))
        self.wait_done = list(wait_done)
        self.succ = []; self.pred = []
        self.bias = bias
        self.lbias = 0
        self.name = name
        self.is_mfma = any(i.kind == "mfma" for i in self.ins)
        self.cost = sum(issue_cost(i) for i in self.ins)
        self.unit = None; self.occ = 0
        for i in self.ins:
            u, o = unit_occ(i)
            if u: self.unit = u; self.occ += o
        self.is_pk = any(i.op.startswith("v_pk_") for i in self.ins)
        self.after = []
        self.minready = 0
        self.ext_only = False

def is_mem(i):
    return i.kind in ("ds", "vmem", "smem")

def edge_latency(p, c, typ):
    pl = p.ins[-1]
    lat = p.cost
    if typ == "raw":
        for i in p.ins:
            if i.kind == "ds" and "load" in i.flags and (i.writes & c.reads): lat = max(lat, p.occ + LAT_DS)
            if i.kind == "vmem" and "load" in i.flags and (i.writes & c.reads): lat = max(lat, p.occ + LAT_VM)
    n = 0
    for pi in p.ins:
        for ci in c.ins:
            if ci.kind in ("label", "dir", "ctl", "branch"): continue
            n = max(n, need(pi, ci))
    if n:
        lat = max(lat, 4 * (n + 1) + (4 if p.is_mfma else 0))
    if p.is_mfma and c.is_mfma:
        lat = max(lat, 16)
    return lat

class Block:
    def __init__(self):
        self.nodes = []
    def add(self, texts, rd=(), wr=(), wait_done=(), bias=0, name=None, after=(), minready=0, lbias=0):
        n = Node(texts, rd, wr, wait_done, bias, name)
        n.lbias = lbias
        n.after = list(after)
        n.minready = minready
        n.idx = len(self.nodes)
        self.nodes.append(n)
        return n
    __call__ = add

    def build(self):
        nodes = self.nodes
        lastw = {}
        readers = {}
        def link(p, c, lat):
            if p is c: return
            p.succ.append((c, lat)); c.pred.append((p, lat))
        for c in nodes:
            edges = {}
            def ed(p, typ):
                l = edge_latency(p, c, typ)
                edges[p] = max(edges.get(p, 0), l)
            for r in c.reads:
                if r in lastw: ed(lastw[r], "raw")
            for r in c.writes:
                if r in lastw:
                    ed(lastw[r], "waw")
                for q in readers.get(r, []):
                    ed(q, "war")
            for p in c.wait_done:
                if c.ext_only: continue
                l = p.cost
                if any(i.kind == "ds" for i in p.ins):
                    l = p.occ + (LAT_DS if any("load" in i.flags for i in p.ins) else LAT_DSW)
                if any(i.kind == "vmem" for i in p.ins): l = p.occ + LAT_VM
                edges[p] = max(edges.get(p, 0), l)
            for p in c.after:
                edges[p] = max(edges.get(p, 0), p.cost)
            for p, l in edges.items():
                if any(i.op == "s_barrier" for i in p.ins): l += LAT_BAR
                link(p, c, l)
            for r in c.writes:
                lastw[r] = c; readers[r] = []
            for r in c.reads:
                if r not in c.writes:
                    readers.setdefault(r, []).append(c)
                else:
                    readers[r] = []
        for n in reversed(nodes):
            pr = n.cost
            for s, l in n.succ:
                pr = max(pr, l + s.prio)
            n.prio = pr + n.bias

    def schedule(self, verbose=False, mfma_guard=6):
        self.build()
        nodes = self.nodes
        for n in nodes:
            n.npred = len(n.pred); n.ready = n.minready; n.t = None
        avail = [n for n in nodes if n.npred == 0]
        t = 0
        mfma_free = 0
        last_mfma = -100
        ufree = {"lds": 0, "ta": 0}
        order = []
        while avail:
            def start(n):
                s = max(n.ready, t)
                if n.is_mfma: s = max(s, mfma_free)
                if n.is_pk: s = max(s, last_mfma + 28)
                return s
            now = [n for n in avail if start(n) <= t]
            if not now:
                t = min(start(n) for n in avail)
                continue
            now.sort(key=lambda n: (-(n.prio + n.lbias), n.idx))
            pick = None
            for cand in now:
                if cand.is_mfma:
                    blocked = False
                    for o in avail:
                        if o is cand or not o.is_mfma: continue
                        if o.prio > cand.prio + 16 and t < o.ready < t + 16 - mfma_guard:
                            blocked = True; break
                    if blocked: continue
                pick = cand; break
            if pick is None:
                t += 4
                continue
            pick.t = t
            order.append(pick)
            avail.remove(pick)
            if pick.is_mfma: mfma_free = t + 16; last_mfma = t
            dly = 0
            if pick.unit:
                st = max(t, ufree[pick.unit])
                dly = st - t
                ufree[pick.unit] = st + pick.occ
            for s, l in pick.succ:
                s.ready = max(s.ready, t + l + (dly if l > pick.cost + 8 else 0))
                s.npred -= 1
                if s.npred == 0: avail.append(s)
            t += pick.cost
        assert len(order) == len(nodes), (len(order), len(nodes))
        self.order = order
        self.tend = t
        return order

def insert_waits(order, vm_pending=None, lg_pending=None, end_wait=None):
    out = []
    vm = list(vm_pending or [])
    lg = list(lg_pending or [])
    def emit_wait(nvm, nlg):
        parts = []
        nonlocal vm, lg
        if nvm is not None and nvm < len(vm):
            parts.append(f"vmcnt({min(nvm, 63)})")
            vm = vm[len(vm) - nvm:] if nvm > 0 else []
        if nlg is not None and nlg < len(lg):
            k = min(nlg, 15)
            parts.append(f"lgkmcnt({k})")
            lg = lg[len(lg) - k:] if k > 0 else []
        if parts: out.append("s_waitcnt " + " ".join(parts))
    for n in order:
        first = True
        for i in n.ins:
            if i.kind in ("label", "dir"):
                out.append(i.text); continue
            touched = i.reads | i.writes
            nvm = nlg = None
            for q, which in ((vm, "vm"), (lg, "lg")):
                for k, (regs, node) in enumerate(q):
                    hit = False
                    ov = regs & touched
                    if ov:
                        hit = True
                        if not (ov & i.reads) and ((which == "vm" and i.kind == "vmem") or (which == "lg" and i.kind == "ds")):
                            hit = False
                    if first and node in n.wait_done: hit = True
                    if hit:
                        left = len(q) - 1 - k
                        if which == "vm": nvm = left if nvm is None else min(nvm, left)
                        else: nlg = left if nlg is None else min(nlg, left)
            emit_wait(nvm, nlg)
            out.append(i.text)
            first = False
            if i.kind == "vmem":
                vm.append((set(i.writes) if "load" in i.flags else set(), n))
                assert len(vm) <= 63, "vmcnt overflow"
            elif i.kind == "ds":
                lg.append((set(i.writes) if "load" in i.flags else set(), n))
            elif i.kind == "smem":
                raise ValueError("no smem inside scheduled regions")
    return out, vm, lg

def dump(order):
    s = []
    for n in order:
        s.append(f"{n.t:5d} p{n.prio:5d} {' | '.join(i.text for i in n.ins)}")
    return "\n".join(s)
```

```python
import sys
from asmdsl import *
from layout import *
import roles as R
import chain as C
NAME = "parallel_sum__memory_aug_recurrent_mem_tr__dense_activation_relu__prompt"
out_path = sys.argv[1] if len(sys.argv) > 1 and sys.argv[1].endswith(".s") else f"cdna_kernels/{NAME}.s"
hdr = open(f"cdna_kernels/{NAME}.s.ref").read().split("; Override launch geometry")[0]

def finish(P, name, nfv, accum, forces=((),)):
    n = P.fix_hazards()
    errs = []
    for f in forces: errs += P.check_waits(name, force=set(f))
    print(name, "nops", n, "maxregs", P.maxregs(), "instrs", len(P.ins))
    for e in errs[:20]: print(e)
    return kernel_text(name, P, nfv, accum)

kern = []
P = Prog()
P("s_cmp_ge_u32 s2, 128\n s_cbranch_scc1 LN_X")
R.load_ptrs(P)
P("s_mov_b32 s60, s2")
R.emit_ln(P, 60)
P.label("LN_X"); P("s_endpgm")
kern.append(finish(P, "ln_kernel", 96, 96, [(), ("LN_4",)]))
P = Prog()
P("s_cmp_ge_u32 s2, 528\n s_cbranch_scc1 G1_X")
R.load_ptrs(P)
P(f"s_and_b32 s{R.S_RB}, s2, 7\n s_lshr_b32 s4, s2, 3")
P("s_cmp_lt_u32 s4, 16\n s_cbranch_scc1 G1_k\n s_cmp_lt_u32 s4, 32\n s_cbranch_scc1 G1_v\n s_cmp_lt_u32 s4, 50\n s_cbranch_scc1 G1_h")
P(f"s_sub_u32 s{R.S_CB}, s4, 50"); R.emit_tile(P, "q", "G1q"); P("s_endpgm")
P.label("G1_k"); P(f"s_mov_b32 s{R.S_CB}, s4"); R.emit_tile(P, "k", "G1k"); P("s_endpgm")
P.label("G1_v"); P(f"s_sub_u32 s{R.S_CB}, s4, 16"); R.emit_tile(P, "v", "G1v"); P("s_endpgm")
P.label("G1_h"); P(f"s_sub_u32 s{R.S_CB}, s4, 32"); R.emit_tile(P, "h", "G1h")
P.label("G1_X"); P("s_endpgm")
kern.append(finish(P, "gemm1_kernel", 512, 256, [(), ("G1_k",), ("G1_v",), ("G1_h",)]))
P = Prog()
P("s_cmp_ge_u32 s2, 256\n s_cbranch_scc1 CH_X")
P("s_and_b32 s3, s2, 7\n s_cmp_lg_u32 s3, 0\n s_cbranch_scc1 F2_go")
for a_ in sys.argv[1:]:
    if "=" in a_:
        k_, val_ = a_.split("=")
        if k_ in ("DB1", "DB2"): setattr(C, k_, bool(int(val_)))
        else: C.KN[k_] = int(val_)
C.emit_chain(P)
P.label("F2_go")
P("s_and_b32 s4, s2, 7\n s_cmp_lt_u32 s4, 2\n s_cbranch_scc1 F2_X\n s_lshr_b32 s5, s2, 3\n s_cmp_ge_u32 s5, 24\n s_cbranch_scc1 F2_X")
R.load_ptrs(P)
P(f"s_sub_u32 s{R.S_KS}, s4, 2\n s_and_b32 s{R.S_RB}, s5, 7\n s_lshr_b32 s{R.S_CB}, s5, 3")
R.emit_tile(P, "f", "F2t")
P.label("F2_X"); P("s_endpgm")
fs = []
for w in range(4):
    fs.append((f"CH_gof{w}", f"CH_f{w}_p2_ok", f"CH_f{w}_p1_ok")); fs.append((f"CH_gos{w}", "CH_slow", f"CH_s{w}_p2_ok", f"CH_s{w}_p1_ok"))
fs.append(("F2_go",))
kern.append(finish(P, "chain_kernel", 512, 256, fs))
P = Prog()
P("s_cmp_ge_u32 s2, 256\n s_cbranch_scc1 TL_X")
R.load_ptrs(P)
P(f"s_and_b32 s{R.S_SEG}, s2, 7\n s_lshr_b32 s4, s2, 3\n s_lshr_b32 s{R.S_HG}, s4, 2\n s_and_b32 s{R.S_CQ}, s4, 3")
R.emit_tail_setup(P, "new")
P.label("TL_loop")
R.emit_tail_loads(P)
R.emit_tail_sx(P)
X = R.emit_tail_km_loads(P)
R.emit_tail_rest(P, X)
P(f"s_add_u32 s{R.S_SEG}, s{R.S_SEG}, 8\n s_cmp_lt_u32 s{R.S_SEG}, 64\n s_cbranch_scc1 TL_loop")
P.label("TL_X"); P("s_endpgm")
kern.append(finish(P, "tail_kernel", 512, 256))
P = Prog()
P("s_cmp_ge_u32 s2, 1152\n s_cbranch_scc1 FN_X")
R.load_ptrs(P)
P(f"s_mul_i32 s4, s2, 3641\n s_lshr_b32 s{R.S_SEG}, s4, 16\n s_mul_i32 s4, s{R.S_SEG}, 18\n s_sub_u32 s4, s2, s4\n s_lshl_b32 s4, s4, 2\n s_add_u32 s{R.S_U}, s4, s{R.S_W}")
R.emit_final(P)
P.label("FN_X"); P("s_endpgm")
kern.append(finish(P, "final_kernel", 96, 96))

lines = ["; @launch kernel=ln_kernel grid=(128,1,1) block=(256,1,1) lds=512",
         "; @launch kernel=gemm1_kernel grid=(528,1,1) block=(256,1,1) lds=131072",
         "; @launch kernel=chain_kernel grid=(256,1,1) block=(256,1,1) lds=163840",
         "; @launch kernel=tail_kernel grid=(256,1,1) block=(256,1,1) lds=131072",
         "; @launch kernel=final_kernel grid=(1152,1,1) block=(256,1,1) lds=0"]
txt = hdr + "\n".join(lines) + "\n.amdgcn_target \"amdgcn-amd-amdhsa--gfx950\"\n" + "\n".join(kern)
open(out_path, "w").write(txt)
print("bytes", len(txt))
for sg in range(1152): assert (sg * 3641 >> 16) == sg // 18
```
